```python
import torch

def _softmax(x, axis=-1):
    return torch.softmax(x, dim=axis)

def _gelu(x):
    return torch.nn.functional.gelu(x, approximate='tanh')

def _silu(x):
    return torch.nn.functional.silu(x)

def _sigmoid(x):
    return torch.sigmoid(x)

def _layernorm(x, axis=-1, eps=1e-05):
    m = x.mean(dim=axis, keepdim=True)
    v = x.var(dim=axis, keepdim=True, unbiased=False)
    return (x - m) / torch.sqrt(v + eps)

def _scatter_add(tgt, idx, src, axis=0):
    return tgt.clone().index_add_(axis, idx, src)

def _segment_sum(src, seg, n):
    out = torch.zeros((n,) + src.shape[1:], dtype=src.dtype)
    return out.index_add_(0, seg, src)

def _pad(x, pw):
    flat = tuple((v for pair in reversed(pw) for v in pair))
    return torch.nn.functional.pad(x, flat)
kernel_name = 'gated_mix__memory_aug_recurrent_mem_tr__grouped_kv_mqa__prompt'

def setup_inputs():

    _w = lambda a: (lambda t: t.to(torch.bfloat16) if t.is_floating_point() else t)(torch.as_tensor(a))

    def _A_setup():
        B, S, Dm = (1, 2048, 512)
        H, Dh = (32, 128)
        M, seg = (8, 32)
        seg = min(seg, S)
        S = S // seg * seg
        return {'x': _w((lambda *s: torch.randn(*s, dtype=torch.bfloat16) * 0.05)(B, S, Dm)), 'mem0': _w((lambda *s: torch.randn(*s, dtype=torch.bfloat16) * 0.8)(B, M, Dm)), 'Wq': _w((lambda *s: torch.randn(*s, dtype=torch.bfloat16) * 1.6)(Dm, H, Dh) * Dm ** (-0.5)), 'Wk': _w((lambda *s: torch.randn(*s, dtype=torch.bfloat16) * 1.6)(Dm, H, Dh) * Dm ** (-0.5)), 'Wv': _w((lambda *s: torch.randn(*s, dtype=torch.bfloat16) * 0.8)(Dm, H, Dh) * Dm ** (-0.5)), 'Wo': _w((lambda *s: torch.randn(*s, dtype=torch.bfloat16) * 0.8)(H, Dh, Dm) * (H * Dh) ** (-0.5)), 'seg_len': seg}
    _A_in = _A_setup()

    def _B_setup():
        B, S, D, H = (1, 2048, 512, 32)
        Dh = D // H
        return {'x': _w((lambda *s: torch.randn(*s, dtype=torch.bfloat16) * 0.05)(B, S, D)), 'wq': _w((lambda *s: torch.randn(*s, dtype=torch.bfloat16) * 1.6)(D, H * Dh)), 'wk': _w((lambda *s: torch.randn(*s, dtype=torch.bfloat16) * 1.6)(D, Dh)), 'wv': _w((lambda *s: torch.randn(*s, dtype=torch.bfloat16) * 0.05)(D, Dh)), 'wo': _w((lambda *s: torch.randn(*s, dtype=torch.bfloat16) * 0.05)(H * Dh, D))}
    _B_in = _B_setup()
    return {'A_x': _A_in['x'], 'A_mem0': _A_in['mem0'], 'A_Wq': _A_in['Wq'], 'A_Wk': _A_in['Wk'], 'A_Wv': _A_in['Wv'], 'A_Wo': _A_in['Wo'], 'A_seg_len': _A_in['seg_len'], 'B_x': _B_in['x'], 'B_wq': _B_in['wq'], 'B_wk': _B_in['wk'], 'B_wv': _B_in['wv'], 'B_wo': _B_in['wo'], 'gate_w': _w((lambda *s: torch.randn(*s, dtype=torch.bfloat16) * 0.05)(512) * 16.0)}

def reference(A_x, A_mem0, A_Wq, A_Wk, A_Wv, A_Wo, A_seg_len, B_x, B_wq, B_wk, B_wv, B_wo, gate_w):

    def _A_ref(x, mem0, Wq, Wk, Wv, Wo, seg_len):
        B, S, Dm = x.shape
        H, Dh = (Wq.shape[1], Wq.shape[2])
        M = mem0.shape[1]
        scale = Dh ** (-0.5)
        n_seg = S // seg_len
        L = M + seg_len
        idx = torch.arange(L)
        mask = (idx[:, None] < M) | (idx[:, None] >= idx[None, :])
        mem = mem0
        outs = []
        for s in range(n_seg):
            xs = x[:, s * seg_len:(s + 1) * seg_len, :].clone()
            h = torch.concatenate([mem, xs], axis=1)
            q = torch.einsum('btd,dhe->bhte', h, Wq)
            k = torch.einsum('btd,dhe->bhte', h, Wk)
            v = torch.einsum('btd,dhe->bhte', h, Wv)
            scores = torch.einsum('bhqe,bhke->bhqk', q, k) * scale
            scores = torch.where(mask[None, None], scores, -1000000000.0)
            p = _softmax(scores, axis=-1)
            o = torch.einsum('bhqk,bhke->bhqe', p, v)
            o = torch.einsum('bhte,hed->btd', o, Wo)
            mem = o[:, :M, :].clone()
            outs.append(o[:, M:, :])
        return torch.concatenate(outs, axis=1)

    def _B_ref(x, wq, wk, wv, wo):
        B, S, D = x.shape
        H = 32
        Dh = D // H
        q = (lambda x, *d: x.permute(*d))((x @ wq).reshape(B, S, H, Dh), 0, 2, 1, 3)
        k = x @ wk
        v = x @ wv
        scores = torch.einsum('bhqd,bkd->bhqk', q, k) * Dh ** (-0.5)
        p = _softmax(scores, axis=-1)
        o = torch.einsum('bhqk,bkd->bhqd', p, v)
        return (lambda x, *d: x.permute(*d))(o, 0, 2, 1, 3).reshape(B, S, H * Dh) @ wo
    x = A_x
    g = _sigmoid((x * gate_w).sum(-1, keepdims=True))
    a = _A_ref(x, A_mem0, A_Wq, A_Wk, A_Wv, A_Wo, A_seg_len)
    b = _B_ref(x, B_wq, B_wk, B_wv, B_wo)
    return g * a + (1 - g) * b
```

```python
class Asm:
    def __init__(self):
        self.lines = []
        self.uid = 0
    def __call__(self, s=""):
        for l in s.split("\n"):
            l = l.strip()
            if l:
                self.lines.append(("  " + l) if not l.endswith(":") else l)
    def c(self, s):
        self.lines.append("  ; " + s)
    def label(self, name):
        self.lines.append(name + ":")
    def new(self, base):
        self.uid += 1
        return f"{base}_{self.uid}"
    def text(self):
        return "\n".join(self.lines) + "\n"

def v(a, n=1):
    return f"v{a}" if n == 1 else f"v[{a}:{a+n-1}]"
def a(x, n=1):
    return f"a{x}" if n == 1 else f"a[{x}:{x+n-1}]"
def s(x, n=1):
    return f"s{x}" if n == 1 else f"s[{x}:{x+n-1}]"
class R:
    def __init__(self, kind, idx): self.kind = kind; self.idx = idx
    def __call__(self, off=0, n=1):
        x = self.idx + off
        return (v if self.kind == 'v' else a)(x, n)
    def __add__(self, k): return R(self.kind, self.idx + k)
def V(i): return R('v', i)
def A(i): return R('a', i)
```

```python
from asmlib import *
from layout import *
from chain2 import srd, bits
import struct, math
def f2u(x): return struct.unpack("<I", struct.pack("<f", x))[0]

sWS, sDBG = 8, 16
sWV = 21
bL16, bVR, bOUT, bT0, bT1 = 1, 2, 3, 4, 5
bQ = 8
bKF = 12
bVF = 20
bP = 36
bS = 48
bO = 80
bM, bAL = 96, 97
bG = 98
bT = 40
bMASK = 48
bTASK, bSQ, bHB, bJ = 24, 25, 26, 27
bSPIN = 28
L_VB = 65536
L_TK = 131072
SPIN_MAX = 4000000

def wait_flag(A_, off_s, thresh, pfx, abort, tv=bT0, tv2=bT1, spin=bSPIN):
    A_(f"s_mov_b32 {s(spin)}, 0")
    A_(f"v_mov_b32 {v(tv2)}, 0")
    A_.label(f"{pfx}_WF")
    A_(f"buffer_load_dword {v(tv)}, {v(tv2)}, {s(sWS,4)}, {s(off_s)} offen sc1")
    A_(f"s_add_u32 {s(spin)}, {s(spin)}, 1")
    A_(f"s_cmp_gt_u32 {s(spin)}, {SPIN_MAX}")
    A_(f"s_cbranch_scc1 {abort}")
    A_("s_waitcnt vmcnt(0)")
    A_(f"v_cmp_gt_u32 vcc, {thresh}, {v(tv)}")
    A_(f"s_cbranch_vccz {pfx}_WFD")
    A_("s_sleep 8")
    A_(f"s_branch {pfx}_WF")
    A_.label(f"{pfx}_WFD")

def b_role(A_, waits=True, abort="K_ABORT"):
    t = bT
    A_(f"v_lshlrev_b32 {v(bL16)}, 4, v0")
    bits(A_, bVR, [(5,1,8), (0,4,4)], add_c=L_VB, tmp=bT0)
    bits(A_, bOUT, [(4,1,10), (5,1,8), (0,4,4)], tmp=bT0)
    A_(f"s_mov_b32 {s(bMASK)}, 0x0000ffff")
    A_(f"s_mov_b32 {s(bMASK+1)}, 0x0000ffff")
    A_(f"v_and_b32 {v(bT0)}, 27, v0")
    A_(f"v_cmp_eq_u32 vcc, 16, {v(bT0)}")
    A_(f"v_mov_b32 {v(bT1)}, 0x3f803f80")
    A_(f"v_mov_b32 {v(bT0)}, 0")
    A_(f"v_cndmask_b32 {v(bT0)}, {v(bT0)}, {v(bT1)}, vcc")
    for k in range(16): A_(f"v_mov_b32 {v(bVF+k)}, {v(bT0)}")
    if waits:
        for k in range(8):
            A_(f"s_mov_b32 {s(t)}, {FL_G + (208+k)*128}")
            wait_flag(A_, t, "8", f"BW{k}", abort)
    A_(f"s_lshl_b32 {s(t)}, {s(sWV)}, 15")
    A_(f"s_add_u32 {s(t+1)}, {s(t)}, {WS_KB}")
    for i in range(32):
        A_(f"s_mov_b32 m0, {s(t)}")
        A_(f"s_add_u32 {s(t)}, {s(t)}, 1024")
        A_(f"buffer_load_dwordx4 {v(bL16)}, {s(sWS,4)}, {s(t+1)} offen sc1 lds")
        A_(f"s_add_u32 {s(t+1)}, {s(t+1)}, 1024")
    A_("s_waitcnt vmcnt(0)")
    A_.label("B_NEXT")
    A_("s_barrier")
    A_(f"s_cmp_eq_u32 {s(sWV)}, 0")
    A_("s_cbranch_scc0 B_TK")
    A_("s_mov_b64 exec, 1")
    A_(f"v_mov_b32 {v(bT0)}, {D_BTICKET}")
    A_(f"v_mov_b32 {v(bT1)}, 1")
    A_(f"buffer_atomic_add {v(bT1)}, {v(bT0)}, {s(sDBG,4)}, 0 offen sc0")
    A_(f"v_mov_b32 {v(bT0)}, {L_TK}")
    A_("s_waitcnt vmcnt(0)")
    A_(f"ds_write_b32 {v(bT0)}, {v(bT1)}")
    A_("s_waitcnt lgkmcnt(0)")
    A_("s_mov_b64 exec, -1")
    A_.label("B_TK")
    A_("s_barrier")
    A_(f"v_mov_b32 {v(bT0)}, {L_TK}")
    A_(f"ds_read_b32 {v(bT1)}, {v(bT0)}")
    A_("s_waitcnt lgkmcnt(0)")
    A_(f"v_readfirstlane_b32 {s(bTASK)}, {v(bT1)}")
    A_("s_nop 3")
    A_(f"s_cmp_ge_u32 {s(bTASK)}, 512")
    A_("s_cbranch_scc1 B_DONE")
    A_(f"s_lshr_b32 {s(bSQ)}, {s(bTASK)}, 3")
    A_(f"s_and_b32 {s(bHB)}, {s(bTASK)}, 7")
    A_(f"s_lshl_b32 {s(bHB)}, {s(bHB)}, 2")
    A_(f"s_add_u32 {s(bHB)}, {s(bHB)}, {s(sWV)}")
    if waits:
        A_(f"s_lshr_b32 {s(t)}, {s(bSQ)}, 4")
        A_(f"s_lshl_b32 {s(t)}, {s(t)}, 2")
        A_(f"s_lshr_b32 {s(t+1)}, {s(bHB)}, 3")
        A_(f"s_add_u32 {s(t)}, {s(t)}, {s(t+1)}")
        A_(f"s_lshl_b32 {s(t)}, {s(t)}, 7")
        A_(f"s_add_u32 {s(t)}, {s(t)}, {FL_G + 192*128}")
        A_(f"s_and_b32 {s(t+1)}, {s(bSQ)}, 15")
        A_(f"s_add_u32 {s(t+1)}, {s(t+1)}, 1")
        wait_flag(A_, t, s(t+1), "BWQ", abort)
    A_(f"s_lshl_b32 {s(t)}, {s(bSQ)}, 5")
    A_(f"s_add_u32 {s(t)}, {s(t)}, {s(bHB)}")
    A_(f"s_lshl_b32 {s(t)}, {s(t)}, 10")
    A_(f"s_add_u32 {s(t)}, {s(t)}, {WS_QB}")
    A_(f"buffer_load_dwordx4 {v(bQ,4)}, {v(bL16)}, {s(sWS,4)}, {s(t)} offen sc1")
    A_(f"s_lshl_b32 {s(t)}, {s(bSQ)}, 7")
    A_(f"s_add_u32 {s(t)}, {s(t)}, {WS_G}")
    A_(f"v_and_b32 {v(bT0)}, 31, v0")
    A_(f"v_lshlrev_b32 {v(bT0)}, 2, {v(bT0)}")
    A_(f"buffer_load_dword {v(bG)}, {v(bT0)}, {s(sWS,4)}, {s(t)} offen sc1")
    KA, VAa = 6, 7
    A_(f"v_mov_b32 {v(KA)}, {v(bL16)}")
    A_(f"v_mov_b32 {v(VAa)}, {v(bVR)}")
    def kread(buf, off): return f"ds_read_b128 {v(bKF+4*buf,4)}, {v(KA)} offset:{off}"
    def vread(buf, ab, off): return f"ds_read_b128 {v(bVF+8*buf+4*ab,4)}, {v(VAa)} offset:{off+512*ab}"
    def smm(sb, kb): return f"v_mfma_f32_32x32x16_bf16 {v(bS+16*sb,16)}, {v(bKF+4*kb,4)}, {v(bQ,4)}, 0"
    A_(kread(0, 0)); A_(kread(1, 1024))
    for k in range(0, 16, 2): A_(f"v_mov_b64 {v(bO+k,2)}, 0")
    A_("s_waitcnt vmcnt(0) lgkmcnt(1)")
    A_(smm(0, 0))
    A_(f"s_mov_b32 {s(bJ)}, 0")
    A_("s_nop 7")
    A_.label("B_LOOP")
    for half in range(2):
        sb = half; nb = 1 - half
        A_(f"s_mov_b64 exec, {s(bMASK,2)}")
        A_(vread(half, 0, half*1024)); A_(vread(half, 1, half*1024))
        A_("s_mov_b64 exec, -1")
        A_("s_waitcnt lgkmcnt(2)")
        A_(smm(nb, nb))
        A_(kread(sb, (half+2)*1024))
        S = bS + 16*sb
        for r in range(16): A_(f"v_exp_f32 {v(S+r)}, {v(S+r)}")
        for r in range(8): A_(f"v_cvt_pk_bf16_f32 {v(bP+r)}, {v(S+2*r)}, {v(S+2*r+1)}")
        A_("s_waitcnt lgkmcnt(1)")
        A_(f"v_mfma_f32_32x32x16_bf16 {v(bO,16)}, {v(bVF+8*half,4)}, {v(bP,4)}, {v(bO,16)}")
        A_(f"v_mfma_f32_32x32x16_bf16 {v(bO,16)}, {v(bVF+8*half+4,4)}, {v(bP+4,4)}, {v(bO,16)}")
    A_(f"v_add_u32 {v(KA)}, 2048, {v(KA)}")
    A_(f"v_add_u32 {v(VAa)}, 2048, {v(VAa)}")
    A_(f"s_add_u32 {s(bJ)}, {s(bJ)}, 2")
    A_(f"s_cmp_lt_u32 {s(bJ)}, 64")
    A_("s_cbranch_scc1 B_LOOP")
    A_("s_waitcnt lgkmcnt(0)")
    A_("s_nop 7"); A_("s_nop 7")
    A_(f"v_max3_f32 {v(bT0)}, |{v(bO)}|, |{v(bO+1)}|, |{v(bO+2)}|")
    A_(f"v_max3_f32 {v(bT1)}, |{v(bO+3)}|, |{v(bO+4)}|, |{v(bO+5)}|")
    A_(f"v_max3_f32 {v(bT0)}, {v(bT0)}, |{v(bO+6)}|, |{v(bO+7)}|")
    A_(f"v_max_f32 {v(bT0)}, {v(bT0)}, {v(bT1)}")
    A_(f"s_mov_b32 {s(t)}, {hex(f2u(2.0**64))}")
    A_(f"s_mov_b32 {s(t+1)}, {hex(f2u(2.0**-64))}")
    A_(f"s_mov_b32 {s(t+2)}, 0x7f800000")
    A_(f"v_cmp_nle_f32 vcc, {v(bO+8)}, {s(t)}") if False else None
    A_(f"v_cmp_nge_f32 {s(t+4,2)}, {s(t)}, {v(bO+8)}")
    A_(f"v_cmp_nle_f32 vcc, {s(t+1)}, {v(bO+8)}")
    A_("s_nop 3")
    A_(f"s_or_b64 {s(t+4,2)}, {s(t+4,2)}, vcc")
    A_(f"v_cmp_nlt_f32 vcc, {v(bT0)}, {v(bAL)}") if False else None
    A_(f"v_mov_b32 {v(bT1)}, {s(t+2)}")
    A_(f"v_cmp_nlt_f32 vcc, {v(bT0)}, {v(bT1)}")
    A_("s_nop 3")
    A_(f"s_or_b64 vcc, vcc, {s(t+4,2)}")
    A_("s_cbranch_vccz B_OK")
    for k in range(0, 16, 2): A_(f"v_mov_b64 {v(bO+k,2)}, 0")
    A_(f"v_mov_b32 {v(bM)}, 0xff800000")
    A_(f"v_mov_b32 {v(KA)}, {v(bL16)}")
    A_(f"v_mov_b32 {v(VAa)}, {v(bVR)}")
    A_(f"s_mov_b32 {s(bJ)}, 0")
    A_.label("B_FB")
    A_(kread(0, 0))
    A_(f"s_mov_b64 exec, {s(bMASK,2)}")
    A_(vread(0, 0, 0)); A_(vread(0, 1, 0))
    A_("s_mov_b64 exec, -1")
    A_("s_waitcnt lgkmcnt(0)")
    A_(smm(0, 0))
    A_("s_nop 7"); A_("s_nop 7")
    S = bS
    A_(f"v_max3_f32 {v(bT0)}, {v(S)}, {v(S+1)}, {v(bM)}")
    for r in range(2, 16, 2): A_(f"v_max3_f32 {v(bT0)}, {v(bT0)}, {v(S+r)}, {v(S+r+1)}")
    A_(f"v_mov_b32 {v(bT1)}, {v(bT0)}")
    A_("s_nop 1")
    A_(f"v_permlane32_swap_b32 {v(bT0)}, {v(bT1)}")
    A_("s_nop 0")
    A_(f"v_max_f32 {v(bT0)}, {v(bT0)}, {v(bT1)}")
    A_(f"v_sub_f32 {v(bAL)}, {v(bM)}, {v(bT0)}")
    A_(f"v_exp_f32 {v(bAL)}, {v(bAL)}")
    A_(f"v_mov_b32 {v(bM)}, {v(bT0)}")
    for r in range(16): A_(f"v_sub_f32 {v(S+r)}, {v(S+r)}, {v(bT0)}")
    for r in range(16): A_(f"v_exp_f32 {v(S+r)}, {v(S+r)}")
    for r in range(16): A_(f"v_mul_f32 {v(bO+r)}, {v(bO+r)}, {v(bAL)}")
    for r in range(8): A_(f"v_cvt_pk_bf16_f32 {v(bP+r)}, {v(S+2*r)}, {v(S+2*r+1)}")
    A_("s_nop 1")
    A_(f"v_mfma_f32_32x32x16_bf16 {v(bO,16)}, {v(bVF,4)}, {v(bP,4)}, {v(bO,16)}")
    A_(f"v_mfma_f32_32x32x16_bf16 {v(bO,16)}, {v(bVF+4,4)}, {v(bP+4,4)}, {v(bO,16)}")
    A_(f"v_add_u32 {v(KA)}, 1024, {v(KA)}")
    A_(f"v_add_u32 {v(VAa)}, 1024, {v(VAa)}")
    A_("s_nop 7"); A_("s_nop 7")
    A_(f"s_add_u32 {s(bJ)}, {s(bJ)}, 1")
    A_(f"s_cmp_lt_u32 {s(bJ)}, 64")
    A_("s_cbranch_scc1 B_FB")
    A_.label("B_OK")
    A_(f"v_rcp_f32 {v(bT0)}, {v(bO+8)}")
    A_(f"v_sub_f32 {v(bT1)}, 1.0, {v(bG)}")
    A_(f"v_mul_f32 {v(bT0)}, {v(bT0)}, {v(bT1)}")
    for r in range(8): A_(f"v_mul_f32 {v(bO+r)}, {v(bO+r)}, {v(bT0)}")
    for r in range(4): A_(f"v_cvt_pk_bf16_f32 {v(bP+r)}, {v(bO+2*r)}, {v(bO+2*r+1)}")
    A_(f"s_mul_i32 {s(t)}, {s(bSQ)}, {O_SEG}")
    A_(f"s_lshr_b32 {s(t+1)}, {s(bHB)}, 1")
    A_(f"s_add_u32 {s(t+1)}, {s(t+1)}, 128")
    A_(f"s_lshl_b32 {s(t+1)}, {s(t+1)}, 11")
    A_(f"s_add_u32 {s(t)}, {s(t)}, {s(t+1)}")
    A_(f"s_and_b32 {s(t+1)}, {s(bHB)}, 1")
    A_(f"s_lshl_b32 {s(t+1)}, {s(t+1)}, 9")
    A_(f"s_add_u32 {s(t)}, {s(t)}, {s(t+1)}")
    A_(f"s_add_u32 {s(t)}, {s(t)}, {WS_O}")
    A_(f"buffer_store_dwordx4 {v(bP,4)}, {v(bOUT)}, {s(sWS,4)}, {s(t)} offen sc1")
    A_(f"s_lshl_b32 {s(t)}, {s(bSQ)}, 5")
    A_(f"s_add_u32 {s(t)}, {s(t)}, {s(bHB)}")
    A_(f"s_lshl_b32 {s(t)}, {s(t)}, 2")
    A_(f"s_add_u32 {s(t)}, {s(t)}, {FL_OB}")
    A_(f"v_mov_b32 {v(bT0)}, 1")
    A_(f"v_mov_b32 {v(bT1)}, 0")
    A_("s_waitcnt vmcnt(0)")
    A_("s_mov_b64 exec, 1")
    A_(f"buffer_store_dword {v(bT0)}, {v(bT1)}, {s(sWS,4)}, {s(t)} offen sc1")
    A_("s_mov_b64 exec, -1")
    A_("s_branch B_NEXT")
    A_.label("B_DONE")
    A_("s_waitcnt vmcnt(0)")
```

```python
from asmlib import *
from layout import *

vL16, vIDX, vRED, vMST, vPUB, vHI, vMW = 1, 2, 3, 4, 5, 6, 7
vMR = [None, 8, 9, 10]
vWO, vQW, vKW, vQR, vKR, vOW = 11, 12, 13, 14, 15, 16
vFLG = 0
vKXR = 17
vSEL = 18
vT0, vT1 = 22, 23
VX, VXN = 24, 32
M = 40
ACC = 72
KXR = 96
WV = V(128); WQ = A(0); WK = A(128)
QA = [ACC+0, ACC+4]; KA = [ACC+8, ACC+12]; VA = [ACC+16, ACC+20]
def wreg(mat, slot, t):
    jj, cc = slot >> 1, slot & 1
    return mat + (jj*32 + t*16 + cc*8)

sWS, sW, sDBG = 8, 12, 16
sH, sWV, sSTEP = 20, 21, 22
sPRD = 23
sKXS, sVXS, sKMO, sVMO, sRRD, sRWR, sRRS, sPST = 24, 25, 26, 27, 28, 29, 30, 31
sKXD = 36
sKVR = 32
sFLG = 33
sPRS = 37
sC = 38
sT = 40
sSPIN = 48
sTIM = 52

SPIN_MAX = 400000

def srd(A_, base, ptr_lo, nbytes):
    A_(f"s_mov_b32 {s(base)}, {s(ptr_lo)}")
    A_(f"s_and_b32 {s(base+1)}, {s(ptr_lo+1)}, 0xffff")
    A_(f"s_mov_b32 {s(base+2)}, {hex(nbytes)}")
    A_(f"s_mov_b32 {s(base+3)}, 0x20000")

def bits(A_, dst, terms, add_s=None, add_c=0, tmp=vT0):
    first = True
    for (lsb, width, shift) in terms:
        A_(f"v_bfe_u32 {v(tmp)}, v0, {lsb}, {width}")
        if first:
            A_(f"v_lshlrev_b32 {v(dst)}, {shift}, {v(tmp)}"); first = False
        else:
            A_(f"v_lshl_add_u32 {v(dst)}, {v(tmp)}, {shift}, {v(dst)}")
    if add_s is not None: A_(f"v_add_u32 {v(dst)}, {s(add_s)}, {v(dst)}")
    if add_c: A_(f"v_add_u32 {v(dst)}, {add_c}, {v(dst)}")

def lane_consts(A_):
    t = sT
    A_(f"v_lshlrev_b32 {v(vL16)}, 4, v0")
    A_(f"v_bfe_u32 {v(vT0)}, v0, 1, 1")
    A_(f"v_mov_b32 {v(vIDX)}, 0x4444")
    A_(f"v_mov_b32 {v(vT1)}, 0xeeee")
    A_(f"v_cmp_eq_u32 vcc, 1, {v(vT0)}")
    A_("s_nop 1")
    A_(f"v_cndmask_b32 {v(vIDX)}, {v(vIDX)}, {v(vT1)}, vcc")
    bits(A_, vPUB, [(0,4,4), (4,2,2)])
    A_(f"v_add_u32 {v(vHI)}, {L_HI}, {v(vL16)}")
    A_(f"s_lshl_b32 {s(t)}, {s(sWV)}, 11")
    A_(f"s_add_u32 {s(t+1)}, {s(t)}, {L_MEMI}")
    A_(f"v_add_u32 {v(vMW)}, {s(t+1)}, {v(vL16)}")
    for jj in (1, 2, 3):
        A_(f"s_xor_b32 {s(t+1)}, {s(t)}, {jj*2048}")
        A_(f"s_add_u32 {s(t+1)}, {s(t+1)}, {L_MEMI}")
        A_(f"v_add_u32 {v(vMR[jj])}, {s(t+1)}, {v(vL16)}")
    A_(f"s_lshl_b32 {s(t)}, {s(sWV)}, 15")
    A_(f"v_add_u32 {v(vWO)}, {s(t)}, {v(vL16)}")
    A_(f"s_lshl_b32 {s(t)}, {s(sWV)}, 9")
    A_(f"s_add_u32 {s(t+1)}, {s(t)}, {L_QI}")
    A_(f"v_add_u32 {v(vQW)}, {s(t+1)}, {v(vPUB)}")
    A_(f"s_add_u32 {s(t+1)}, {s(t)}, {L_KI}")
    bits(A_, vKW, [(2,2,6), (0,1,5), (4,2,3), (1,1,2)], add_s=t+1)
    bits(A_, vQR, [(5,1,8), (4,1,6), (2,2,4), (0,1,3)], add_c=L_QI)
    bits(A_, vKR, [(5,1,9), (4,1,8), (3,1,7), (2,1,5), (0,2,3)], add_c=L_KI)
    A_(f"s_lshr_b32 {s(t)}, {s(sWV)}, 1")
    A_(f"s_lshl_b32 {s(t)}, {s(t)}, 10")
    A_(f"s_and_b32 {s(t+1)}, {s(sWV)}, 1")
    A_(f"s_lshl_b32 {s(t+1)}, {s(t+1)}, 5")
    A_(f"s_add_u32 {s(t)}, {s(t)}, {s(t+1)}")
    A_(f"s_add_u32 {s(t)}, {s(t)}, {L_OI}")
    bits(A_, vOW, [(1,2,6), (0,1,4), (5,1,8), (4,1,3)], add_s=t)
    A_(f"s_lshr_b32 {s(t)}, {s(sH)}, 2")
    A_(f"s_lshl_b32 {s(t)}, {s(t)}, 10")
    A_(f"s_and_b32 {s(t+1)}, {s(sH)}, 3")
    A_(f"s_lshl_b32 {s(t+2)}, {s(t+1)}, 8")
    A_(f"s_add_u32 {s(t+2)}, {s(t+2)}, {s(t)}")
    bits(A_, vRED, [(4,2,13), (0,4,4)], add_s=t+2)
    A_(f"s_lshl_b32 {s(t+2)}, {s(t+1)}, 6")
    A_(f"s_add_u32 {s(t+2)}, {s(t+2)}, {s(t)}")
    bits(A_, vMST, [(2,2,8), (4,1,5), (5,1,4), (0,2,2)], add_s=t+2)
    bits(A_, M, [(2,1,1), (0,2,0)])
    A_(f"v_bfe_u32 {v(M+1)}, v0, 3, 1")
    A_(f"v_lshlrev_b32 {v(M+1)}, 4, {v(M+1)}")
    A_(f"v_mov_b32 {v(M+2)}, 0x3f80")
    A_(f"v_lshlrev_b32 {v(M+2)}, {v(M+1)}, {v(M+2)}")
    A_(f"v_bfe_u32 {v(M+3)}, v0, 1, 1")
    A_(f"v_cmp_eq_u32 vcc, 1, {v(M+3)}")
    A_("s_nop 1")
    A_(f"v_cndmask_b32 {v(M+2)}, {v(M+2)}, 0, vcc") if False else None
    A_(f"v_mov_b32 {v(M+4)}, 0")
    A_(f"v_cndmask_b32 {v(M+2)}, {v(M+2)}, {v(M+4)}, vcc")
    for k in range(4):
        A_(f"v_cmp_eq_u32 vcc, {k}, {v(M)}")
        A_("s_nop 1")
        A_(f"v_cndmask_b32 {v(vSEL+k)}, {v(M+4)}, {v(M+2)}, vcc")
    A_(f"v_add_u32 {v(vKXR)}, {L_KX0}, {v(vL16)}")

def load_weights(A_, ptr):
    STG = L_HI
    vG1, vG2 = 40, 41
    vSW1 = [42, 43, 44, 45]; vSR1 = [46, 47, 48, 49]
    vSW2, vSR2 = 50, 51
    TMP = KXR
    t = sT
    bits(A_, vG1, [(2,4,13), (0,2,4)])
    bits(A_, vG2, [(3,3,10), (0,3,4)])
    A_(f"s_lshl_b32 {s(t)}, {s(sWV)}, 13")
    A_(f"s_add_u32 {s(t)}, {s(t)}, {STG}")
    bits(A_, vSW1[0], [(1,1,8), (2,1,9), (4,1,10), (5,1,11), (3,1,5), (1,1,6), (2,1,7), (0,1,4)], add_s=t)
    for k in (1, 2, 3):
        A_(f"v_xor_b32 {v(vSW1[k])}, {(k&1)*64 + (k>>1)*128}, {v(vSW1[0])}")
    bits(A_, vSR1[0], [(5,1,10), (4,1,5), (2,1,6), (3,1,7), (0,2,3)], add_s=t)
    for k in (1, 2, 3):
        A_(f"v_xor_b32 {v(vSR1[k])}, {(k&1)*64 + (k>>1)*128}, {v(vSR1[0])}")
    bits(A_, vSW2, [(1,2,8), (4,1,10), (3,1,5), (5,1,6), (0,1,4)], add_s=t)
    bits(A_, vSR2, [(5,1,11), (2,1,5), (4,1,6), (3,1,7), (0,2,3)], add_s=t)

    blocks = [('o', b) for b in range(4)] + [('q', b) for b in range(4)] + [('k', b) for b in range(4)] + [('v', b) for b in range(4)]
    def land(b):
        kind, x = blocks[b]
        return {'o': V(128), 'q': WQ, 'k': WK, 'v': WV}[kind] + 32*x
    SR = {'q': 48, 'k': 52, 'v': 56, 'o': 60}
    srd(A_, SR['q'], ptr['Wq'], 4*MB); srd(A_, SR['k'], ptr['Wk'], 4*MB)
    srd(A_, SR['v'], ptr['Wv'], 4*MB); srd(A_, SR['o'], ptr['Wo'], 4*MB)
    def issue(b):
        kind, x = blocks[b]
        dst = land(b)
        if kind == 'o':
            U, th = x >> 1, x & 1
            A_(f"s_lshl_b32 {s(t)}, {s(sH)}, 17")
            A_(f"s_lshl_b32 {s(t+1)}, {s(sWV)}, 8")
            A_(f"s_add_u32 {s(t)}, {s(t)}, {s(t+1)}")
            A_(f"s_add_u32 {s(t)}, {s(t)}, {U*65536 + th*128}")
            for i in range(8):
                A_(f"buffer_load_dwordx4 {dst(4*i,4)}, {v(vG2)}, {s(SR['o'],4)}, {s(t)} offen")
                if i < 7: A_(f"s_add_u32 {s(t)}, {s(t)}, 8192")
        else:
            A_(f"s_xor_b32 {s(t)}, {s(sWV)}, {x}")
            A_(f"s_lshl_b32 {s(t)}, {s(t)}, 20")
            A_(f"s_lshl_b32 {s(t+1)}, {s(sH)}, 8")
            A_(f"s_add_u32 {s(t)}, {s(t)}, {s(t+1)}")
            A_(f"s_lshl_b32 {s(t+1)}, {s(sWV)}, 6")
            A_(f"s_add_u32 {s(t)}, {s(t)}, {s(t+1)}")
            for i in range(8):
                A_(f"buffer_load_dwordx4 {dst(4*i,4)}, {v(vG1)}, {s(SR[kind],4)}, {s(t)} offen")
                if i < 7: A_(f"s_add_u32 {s(t)}, {s(t)}, 131072")
    LOOK = 7
    for b in range(LOOK): issue(b)
    for b in range(16):
        kind, x = blocks[b]
        issued = min(16, b + LOOK)
        A_(f"s_waitcnt vmcnt({8*(issued - b - 1)})")
        src = land(b)
        if kind == 'o':
            U, th = x >> 1, x & 1
            for i in range(8):
                off = (i & 1)*2048 + ((i >> 1) & 1)*4096 + (i >> 2)*128
                A_(f"ds_write_b128 {v(vSW2)}, {src(4*i,4)} offset:{off}")
            A_("s_waitcnt lgkmcnt(0)")
            for tt in range(4):
                for m in range(4):
                    off = (tt + 4*(m & 1) + 16*(m >> 1))*256
                    A_(f"ds_read_b64_tr_b16 {v(TMP + tt*8 + 2*m, 2)}, {v(vSR2)} offset:{off}")
            A_("s_waitcnt lgkmcnt(0)")
            for tt in range(4):
                tl = th*4 + tt
                for hf in range(2):
                    off = (tl*2 + U)*2048 + hf*1024
                    A_(f"ds_write_b128 {v(vWO)}, {v(TMP + tt*8 + 4*hf, 4)} offset:{off}")
            A_("s_waitcnt lgkmcnt(0)")
        else:
            for i in range(8):
                A_(f"ds_write_b128 {v(vSW1[i&3])}, {src(4*i,4)} offset:{(i >> 2)*4096}")
            A_("s_waitcnt lgkmcnt(0)")
            for tl in range(2):
                for cc in range(2):
                    for m in range(4):
                        off = (tl + 2*(m & 1) + 8*(m >> 1) + 16*cc)*256
                        A_(f"ds_read_b64_tr_b16 {src(tl*16 + cc*8 + 2*m, 2)}, {v(vSR1[tl + 2*(m&1)])} offset:{off}")
            A_("s_waitcnt lgkmcnt(0)")
        if b + LOOK < 16: issue(b + LOOK)

def load_mem0(A_, ptr_lo):
    srd(A_, sW, ptr_lo, 8192)
    bits(A_, vT1, [(2,2,11), (0,1,10), (1,1,6), (4,2,3)])
    A_(f"s_lshl_b32 {s(sT)}, {s(sWV)}, 8")
    X = M + 8
    for j in range(2):
        A_(f"buffer_load_dwordx2 {v(X+4*j,2)}, {v(vT1)}, {s(sW,4)}, {s(sT)} offen offset:{128*j}")
        A_(f"buffer_load_dwordx2 {v(X+4*j+2,2)}, {v(vT1)}, {s(sW,4)}, {s(sT)} offen offset:{128*j+32}")
    A_(f"s_mov_b32 {s(sT+1)}, 0x05040100")
    A_(f"s_mov_b32 {s(sT+2)}, 0x07060302")
    A_("s_waitcnt vmcnt(0)")
    for j in range(2):
        x0, x1, y0, y1 = X+4*j, X+4*j+1, X+4*j+2, X+4*j+3
        A_(f"v_perm_b32 {v(M+4*j+0)}, {v(y0)}, {v(x0)}, {s(sT+1)}")
        A_(f"v_perm_b32 {v(M+4*j+1)}, {v(y0)}, {v(x0)}, {s(sT+2)}")
        A_(f"v_perm_b32 {v(M+4*j+2)}, {v(y1)}, {v(x1)}, {s(sT+1)}")
        A_(f"v_perm_b32 {v(M+4*j+3)}, {v(y1)}, {v(x1)}, {s(sT+2)}")

def zero(A_, base, n):
    for k in range(0, n, 2):
        A_(f"v_mov_b64 {v(base+k,2)}, 0")

def kv_wait(A_, need_s, pfx, abort):
    a_, d_ = KXR, KXR+1
    A_(f"v_mbcnt_lo_u32_b32 {v(a_)}, -1, 0")
    A_(f"v_mbcnt_hi_u32_b32 {v(a_)}, -1, {v(a_)}")
    A_(f"v_and_b32 {v(d_)}, 1, {v(a_)}")
    A_(f"v_bfe_u32 {v(a_)}, {v(a_)}, 1, 1")
    A_(f"v_lshlrev_b32 {v(a_)}, 6, {v(a_)}")
    A_(f"v_add_u32 {v(a_)}, {v(a_)}, {v(d_)}")
    A_(f"s_lshl_b32 s44, {s(sH)}, 1")
    A_(f"v_add_u32 {v(a_)}, s44, {v(a_)}")
    A_(f"v_lshlrev_b32 {v(a_)}, 7, {v(a_)}")
    A_(f"s_mov_b32 s45, {FL_G}")
    A_("s_mov_b32 s96, 3")
    A_(f"s_mov_b32 {s(sSPIN)}, 0")
    A_.label(pfx)
    A_(f"buffer_load_dword {v(d_)}, {v(a_)}, {s(sWS,4)}, s45 offen sc1")
    A_(f"s_add_u32 {s(sSPIN)}, {s(sSPIN)}, 1")
    A_(f"s_cmp_gt_u32 {s(sSPIN)}, {SPIN_MAX*4}")
    A_(f"s_cbranch_scc1 {abort}")
    A_("s_waitcnt vmcnt(0)")
    A_(f"v_readlane_b32 s44, {v(d_)}, 0")
    A_(f"v_readlane_b32 s46, {v(d_)}, 2")
    A_("s_nop 3")
    A_(f"s_min_u32 s44, s44, s46")
    A_(f"s_lshl_b32 {s(sKVR)}, s44, 1")
    A_(f"v_readlane_b32 s44, {v(d_)}, 1")
    A_(f"v_readlane_b32 s46, {v(d_)}, 3")
    A_("s_nop 3")
    A_(f"s_min_u32 s44, s44, s46")
    A_(f"s_lshl_b32 s44, s44, 1")
    A_(f"s_add_u32 s44, s44, 1")
    A_(f"s_min_u32 {s(sKVR)}, {s(sKVR)}, s44")
    A_(f"s_cmp_ge_u32 {s(sKVR)}, {s(need_s)}")
    A_(f"s_cbranch_scc0 {pfx}")

def chain_tail(A_):
    def smf(d, areg, breg):
        A_(f"v_smfmac_f32_16x16x64_bf16 {v(d,4)}, {v(areg,4)}, {breg}, {v(vIDX)}")
    def W(mat, slot, t): return wreg(mat, slot, t)(0, 8)
    A_("s_waitcnt lgkmcnt(0)")
    A_("s_barrier")
    for j in range(2, 8): A_(f"ds_read_b128 {v(M+4*j,4)}, {v(vMR[j>>1])} offset:{(j&1)*1024}")
    A_(f"v_mov_b32 {v(vT1)}, {s(sSTEP)}")
    A_(f"buffer_store_dword {v(vT1)}, {v(vFLG)}, {s(sWS,4)}, {s(sFLG)} offen sc1")
    A_("s_waitcnt lgkmcnt(0)")
    for j in range(8):
        for t in range(2):
            smf(KA[t], M+4*j, W(WK,j,t)); smf(VA[t], M+4*j, W(WV,j,t))
    A_("s_nop 7"); A_("s_nop 3")
    for r in (KA[0], KA[1], VA[0], VA[1]):
        A_(f"v_add_f32 {v(r)}, {v(r)}, {v(r+2)}")
        A_(f"v_add_f32 {v(r+1)}, {v(r+1)}, {v(r+3)}")
        A_(f"v_cvt_pk_bf16_f32 {v(r)}, {v(r)}, {v(r+1)}")
    A_(f"buffer_store_dword {v(KA[0])}, {v(vPUB)}, {s(sWS,4)}, {s(sKMO)} offen sc1")
    A_(f"buffer_store_dword {v(KA[1])}, {v(vPUB)}, {s(sWS,4)}, {s(sKMO)} offen offset:256 sc1")
    A_(f"buffer_store_dword {v(VA[0])}, {v(vPUB)}, {s(sWS,4)}, {s(sVMO)} offen sc1")
    A_(f"buffer_store_dword {v(VA[1])}, {v(vPUB)}, {s(sWS,4)}, {s(sVMO)} offen offset:256 sc1")
    A_("s_waitcnt vmcnt(0)")
    A_("s_barrier")
    A_(f"v_mov_b32 {v(vT1)}, 64")
    A_(f"buffer_store_dword {v(vT1)}, {v(vFLG)}, {s(sWS,4)}, {s(sFLG)} offen sc1")
    A_("s_waitcnt vmcnt(0)")

def chain_loop(A_, nsteps, timing=False, abl=(), RW=0, d1=0, d2=0, cut=-1, hop=0, noreset=0, cnt=0, early=0, trace=0, flags=False):
    LOOP, POLLM, POLLP, ABORT, DONE, NOTRED = "CH_LOOP", "CH_POLLM", "CH_POLLP", "CH_ABORT", "CH_DONE", "CH_NOTRED"
    S0, S1, Sm = M+8, M+12, M+16
    Qop = [M, M+4, ACC, ACC+4]
    KMop = [ACC+8, ACC+12]
    P1, PM = M, M+4
    ONE = M+20
    VMp = [ACC, ACC+2]
    O0, O1, L = ACC+4, ACC+8, ACC+12
    OC = ACC+20
    FB = [KXR, KXR+8, KXR+16, KXR+24, ACC, ACC+8, ACC+16]
    OP = VX
    PR = KXR
    RD = ACC
    def tstamp(k):
        if timing:
            A_(f"s_memtime {s(sTIM+2*k,2)}")
            A_("s_waitcnt lgkmcnt(0)")
    def mark(k):
        if cut == k:
            A_("s_waitcnt lgkmcnt(0)")
            A_(f"s_add_u32 {s(sSTEP)}, {s(sSTEP)}, 1")
            A_("s_branch CH_CUT")
    def smf(d, areg, breg, *fill):
        A_(f"v_smfmac_f32_16x16x64_bf16 {v(d,4)}, {v(areg,4)}, {breg}, {v(vIDX)}")
        for f in fill:
            if f: A_(f)
    def W(mat, slot, t): return wreg(mat, slot, t)(0, 8)
    def frag(fr, hf):
        b = FB[fr % 7]
        return f"ds_read_b128 {v(b+4*hf,4)}, {v(vWO)} offset:{fr*2048+1024*hf}"
    def mread(j): return f"ds_read_b128 {v(M+4*j,4)}, {v(vMR[j>>1])} offset:{(j&1)*1024}"
    def kxread(k): return f"ds_read_b128 {v(KXR+4*k,4)}, {v(vKXR)} offset:{k*1024}"
    def qtr(u, m): return f"ds_read_b64_tr_b16 {v(Qop[u]+2*m,2)}, {v(vQR)} offset:{512*u+128*m}"
    def kmtr(U, m): return f"ds_read_b64_tr_b16 {v(KMop[U]+2*m,2)}, {v(vKR)} offset:{1024*U+64*m}"
    def add(d, a_, b_): return f"v_add_f32 {v(d)}, {v(a_)}, {v(b_)}"
    def cvt(d, a_, b_): return f"v_cvt_pk_bf16_f32 {v(d)}, {v(a_)}, {v(b_)}"
    def sx(T, u, first, *fill):
        d = (S0, S1)[T]
        c = "0" if first else v(d,4)
        A_(f"v_mfma_f32_16x16x32_bf16 {v(d,4)}, {v(KXR+(T*4+u)*4,4)}, {v(Qop[u],4)}, {c}")
        for f in fill:
            if f: A_(f)

    A_.label(LOOP)
    tstamp(0)
    mark(0)
    if trace:
        A_("s_memtime s[60:61]")
    if hop:
        A_("s_waitcnt lgkmcnt(0)")
        A_("s_barrier")
        A_(f"buffer_store_dwordx4 {v(KXR+28,4)}, {v(vL16)}, {s(sWS,4)}, {s(sPRS)} offen")
        A_(f"buffer_store_dwordx4 {v(KXR+28,4)}, {v(vL16)}, {s(sWS,4)}, {s(sPRS)} offen offset:1024")
        A_(f"s_mov_b32 {s(sT)}, {hop}")
        A_.label("CH_DLY")
        A_("s_nop 7"); A_(f"s_sub_u32 {s(sT)}, {s(sT)}, 1"); A_(f"s_cmp_gt_u32 {s(sT)}, 0"); A_("s_cbranch_scc1 CH_DLY")
        A_(f"v_min_u32 {v(M)}, -2, {v(M)}")
        A_(f"v_min_u32 {v(M+16)}, -2, {v(M+16)}")
        A_(f"buffer_store_dwordx4 {v(M,4)}, {v(vL16)}, {s(sWS,4)}, {s(sPST)} offen")
        for _ in range(4): A_("s_nop 7")
        A_(f"buffer_store_dwordx4 {v(M+16,4)}, {v(vL16)}, {s(sWS,4)}, {s(sPST)} offen offset:1024")
        A_("s_branch CH_HOP")
    smf(QA[0], M,   W(WQ,0,0), f"s_mov_b32 m0, {s(sKXD)}", f"s_add_u32 {s(sT)}, {s(sKXD)}, 1024")
    smf(QA[1], M,   W(WQ,0,1), f"buffer_load_dwordx4 {v(vL16)}, {s(sWS,4)}, {s(sKXS)} offen lds", f"s_mov_b32 m0, {s(sT)}")
    smf(KA[0], M,   W(WK,0,0), f"s_add_u32 {s(sT+1)}, {s(sKXS)}, 1024")
    smf(KA[1], M,   W(WK,0,1), f"buffer_load_dwordx4 {v(vL16)}, {s(sWS,4)}, {s(sT+1)} offen lds")
    smf(QA[0], M+4, W(WQ,1,0), f"buffer_store_dwordx4 {v(KXR+28,4)}, {v(vL16)}, {s(sWS,4)}, {s(sPRS)} offen")
    smf(QA[1], M+4, W(WQ,1,1), f"buffer_load_dwordx4 {v(VXN,4)}, {v(vL16)}, {s(sWS,4)}, {s(sVXS)} offen")
    smf(KA[0], M+4, W(WK,1,0), "s_waitcnt lgkmcnt(0)", "s_barrier")
    smf(KA[1], M+4, W(WK,1,1), mread(2), mread(3))
    smf(VA[0], M,   W(WV,0,0), mread(4), mread(5))
    smf(VA[1], M,   W(WV,0,1), mread(6), mread(7), f"v_mov_b32 {v(vT1)}, {s(sSTEP)}" if flags else None)
    if flags:
        smf(VA[0], M+4, W(WV,1,0), f"buffer_store_dword {v(vT1)}, {v(vFLG)}, {s(sWS,4)}, {s(sFLG)} offen sc1",
            f"buffer_load_dwordx4 {v(VXN+4,4)}, {v(vL16)}, {s(sWS,4)}, {s(sVXS)} offen offset:1024")
    else:
        smf(VA[0], M+4, W(WV,1,0), f"buffer_load_dwordx4 {v(VXN+4,4)}, {v(vL16)}, {s(sWS,4)}, {s(sVXS)} offen offset:1024")
    smf(VA[1], M+4, W(WV,1,1), f"buffer_store_dwordx4 {v(KXR+28,4)}, {v(vL16)}, {s(sWS,4)}, {s(sPRS)} offen offset:1024")
    mark(1)
    nk = 0
    for j in range(2, 8):
        A_(f"s_waitcnt lgkmcnt({(7 - j) + nk})")
        smf(QA[0], M+4*j, W(WQ,j,0), kxread(nk) if nk < 8 else None); nk += 1 if nk < 8 else 0
        smf(QA[1], M+4*j, W(WQ,j,1), kxread(nk) if (nk < 8 and j >= 4) else None); nk += 1 if (nk < 8 and j >= 4) else 0
    assert nk == 8, nk
    mark(2)
    fills = {2: [add(QA[0], QA[0], QA[0]+2)], 3: [add(QA[0]+1, QA[0]+1, QA[0]+3)],
             4: [add(QA[1], QA[1], QA[1]+2)], 5: [add(QA[1]+1, QA[1]+1, QA[1]+3)],
             6: [cvt(vT0, QA[0], QA[0]+1)], 7: [cvt(vT1, QA[1], QA[1]+1)],
             8: [f"ds_write_b32 {v(vQW)}, {v(vT0)}"], 9: [f"ds_write_b32 {v(vQW)}, {v(vT1)} offset:256"]}
    kq = [(j, t) for j in range(2, 8) for t in range(2)]
    for n, (j, t) in enumerate(kq):
        smf(KA[t], M+4*j, W(WK,j,t), *fills.get(n, []))
    mark(3)
    smf(VA[0], M+8,  W(WV,2,0), "s_waitcnt lgkmcnt(0)", "s_barrier")
    smf(VA[1], M+8,  W(WV,2,1), qtr(0,0), qtr(0,1), add(KA[0], KA[0], KA[0]+2))
    smf(VA[0], M+12, W(WV,3,0), qtr(1,0), qtr(1,1), add(KA[0]+1, KA[0]+1, KA[0]+3))
    smf(VA[1], M+12, W(WV,3,1), qtr(2,0), qtr(2,1), add(KA[1], KA[1], KA[1]+2))
    smf(VA[0], M+16, W(WV,4,0), qtr(3,0), qtr(3,1), add(KA[1]+1, KA[1]+1, KA[1]+3))
    smf(VA[1], M+16, W(WV,4,1), None, None, cvt(vT0, KA[0], KA[0]+1))
    mark(4)
    A_(cvt(vT1, KA[1], KA[1]+1))
    A_(f"ds_write_b32 {v(vKW)}, {v(vT0)}")
    A_(f"ds_write_b32 {v(vKW)}, {v(vT1)} offset:256")
    A_("s_waitcnt lgkmcnt(2)")
    sx(0, 0, True, f"buffer_store_dword {v(vT0)}, {v(vPUB)}, {s(sWS,4)}, {s(sKMO)} offen sc1")
    sx(1, 0, True, f"buffer_store_dword {v(vT1)}, {v(vPUB)}, {s(sWS,4)}, {s(sKMO)} offen offset:256 sc1")
    sx(0, 1, False, f"v_mov_b64 {v(Sm,2)}, 0")
    sx(1, 1, False, f"v_mov_b64 {v(Sm+2,2)}, 0")
    sx(0, 2, False, "s_waitcnt lgkmcnt(0)", "s_barrier")
    sx(1, 2, False, kmtr(0,0), kmtr(0,1))
    sx(0, 3, False, kmtr(1,0), kmtr(1,1))
    sx(1, 3, False)
    mark(5)
    smf(VA[0], M+20, W(WV,5,0), frag(0,0), frag(0,1))
    A_("s_waitcnt lgkmcnt(2)")
    smf(Sm, KMop[0], v(M,8))
    smf(Sm, KMop[1], v(ACC,8))
    smf(VA[1], M+20, W(WV,5,1), frag(1,0), frag(1,1), f"v_max3_f32 {v(vT0)}, {v(S0)}, {v(S0+1)}, {v(S0+2)}")
    smf(VA[0], M+24, W(WV,6,0), frag(2,0), frag(2,1), f"v_max3_f32 {v(vT1)}, {v(S1)}, {v(S1+1)}, {v(S1+2)}")
    smf(VA[1], M+24, W(WV,6,1), frag(3,0), frag(3,1), f"v_max3_f32 {v(vT0)}, {v(vT0)}, {v(S0+3)}, {v(S1+3)}")
    smf(VA[0], M+28, W(WV,7,0), None, None, add(Sm, Sm, Sm+2))
    smf(VA[1], M+28, W(WV,7,1), None, None, add(Sm+1, Sm+1, Sm+3))
    tstamp(1)
    mark(6)
    A_(f"v_max3_f32 {v(vT1)}, {v(vT1)}, {v(Sm)}, {v(Sm+1)}")
    A_(f"v_mov_b32 {v(PM+1)}, 0")
    A_(f"v_max_f32 {v(vT0)}, {v(vT0)}, {v(vT1)}")
    A_(f"v_mov_b32 {v(vT1)}, {v(vT0)}")
    A_(f"v_mov_b32 {v(ONE)}, 0x3f803f80")
    A_(f"v_mov_b32 {v(ONE+1)}, 0x3f803f80")
    A_(f"v_permlane16_swap_b32 {v(vT0)}, {v(vT1)}")
    A_(f"v_mov_b32 {v(ONE+2)}, 0x3f803f80")
    A_(f"v_max_f32 {v(vT0)}, {v(vT0)}, {v(vT1)}")
    A_(f"v_mov_b32 {v(vT1)}, {v(vT0)}")
    A_(f"v_mov_b32 {v(ONE+3)}, 0x3f803f80")
    A_(add(VA[0], VA[0], VA[0]+2))
    A_(f"v_permlane32_swap_b32 {v(vT0)}, {v(vT1)}")
    A_(add(VA[0]+1, VA[0]+1, VA[0]+3))
    A_(f"v_max_f32 {v(vT0)}, {v(vT0)}, {v(vT1)}")
    A_(add(VA[1], VA[1], VA[1]+2))
    A_(f"v_mul_f32 {v(vT0)}, {s(sC)}, {v(vT0)}")
    A_(add(VA[1]+1, VA[1]+1, VA[1]+3))
    mark(7)
    for r in (S0, S0+2, S1, S1+2, Sm):
        A_(f"v_pk_fma_f32 {v(r,2)}, {v(r,2)}, {s(sC,2)}, {v(vT0,2)} op_sel_hi:[1,1,0] neg_lo:[0,0,1] neg_hi:[0,0,1]")
    for r in (S0, S0+1, S0+2, S0+3, S1, S1+1, S1+2, S1+3, Sm, Sm+1):
        A_(f"v_exp_f32 {v(r)}, {v(r)}")
    A_(cvt(VMp[0], VA[0], VA[0]+1))
    A_(cvt(P1, S0, S0+1)); A_(cvt(P1+1, S0+2, S0+3)); A_(cvt(P1+2, S1, S1+1)); A_(cvt(P1+3, S1+2, S1+3))
    A_(cvt(PM, Sm, Sm+1))
    A_(cvt(VMp[1], VA[1], VA[1]+1))
    mark(8)
    def mf(txt, *fill):
        A_(txt)
        for f in fill:
            if f: A_(f)
    mf(f"v_mfma_f32_16x16x32_bf16 {v(O0,4)}, {v(VX,4)}, {v(P1,4)}, 0",
       f"buffer_store_dword {v(VMp[0])}, {v(vPUB)}, {s(sWS,4)}, {s(sVMO)} offen sc1",
       f"v_mov_b32 {v(VMp[0]+1)}, 0", f"v_mov_b32 {v(VMp[1]+1)}, 0")
    mf(f"v_mfma_f32_16x16x32_bf16 {v(L,4)}, {v(ONE,4)}, {v(P1,4)}, 0",
       f"buffer_store_dword {v(VMp[1])}, {v(vPUB)}, {s(sWS,4)}, {s(sVMO)} offen offset:256 sc1",
       f"v_mov_b64 {v(M+6,2)}, 0", f"v_mov_b64 {v(M+8,2)}, 0")
    mf(f"v_mfma_f32_16x16x32_bf16 {v(O1,4)}, {v(VX+4,4)}, {v(P1,4)}, 0",
       f"v_mov_b64 {v(M+10,2)}, 0", f"v_mov_b64 {v(M+12,2)}, 0")
    mf(f"v_mfma_f32_16x16x16_bf16 {v(L,4)}, {v(ONE,2)}, {v(PM,2)}, {v(L,4)}",
       f"v_mov_b64 {v(M+14,2)}, 0", f"v_mov_b64 {v(M+16,2)}, 0")
    mf(f"v_mfma_f32_16x16x16_bf16 {v(O0,4)}, {v(VMp[0],2)}, {v(PM,2)}, {v(O0,4)}",
       f"v_mov_b64 {v(M+18,2)}, 0", f"v_mov_b64 {v(M+24,2)}, 0")
    mf(f"v_mfma_f32_16x16x16_bf16 {v(O1,4)}, {v(VMp[1],2)}, {v(PM,2)}, {v(O1,4)}",
       f"v_mov_b64 {v(M+26,2)}, 0", f"v_mov_b64 {v(M+28,2)}, 0")
    mark(9)
    A_(f"v_mov_b64 {v(M+30,2)}, 0")
    A_(f"v_rcp_f32 {v(vT0)}, {v(L)}")
    A_(f"v_mov_b64 {v(M,2)}, 0")
    A_(f"v_mov_b64 {v(M+2,2)}, 0")
    A_(f"v_mov_b64 {v(M+4,2)}, 0")
    A_(f"v_mov_b64 {v(M+20,2)}, 0")
    A_(f"v_mov_b64 {v(M+22,2)}, 0")
    for r in (O0, O0+2, O1, O1+2):
        A_(f"v_pk_mul_f32 {v(r,2)}, {v(r,2)}, {v(vT0,2)} op_sel_hi:[1,0]")
    A_(cvt(OC, O0, O0+1)); A_(cvt(OC+1, O0+2, O0+3))
    A_(f"ds_write_b64 {v(vOW)}, {v(OC,2)}")
    A_(cvt(OC+2, O1, O1+1)); A_(cvt(OC+3, O1+2, O1+3))
    A_(f"ds_write_b64 {v(vOW)}, {v(OC+2,2)} offset:512")
    mark(10)
    A_(frag(4,0)); A_(frag(4,1)); A_(frag(5,0)); A_(frag(5,1))
    A_("s_waitcnt lgkmcnt(4)")
    A_("s_barrier")
    A_(f"ds_read_b128 {v(OP,4)}, {v(vHI)} offset:{L_OI-L_HI}")
    A_(f"ds_read_b128 {v(OP+4,4)}, {v(vHI)} offset:{L_OI-L_HI+1024}")
    A_(frag(6,0)); A_(frag(6,1))
    tstamp(2)
    A_("s_waitcnt lgkmcnt(2)")
    mark(11)
    outstanding = [6]
    post = []
    def tile_post(t):
        b = M + 4*t; st = M + 16*(t >> 2) + (t & 3)
        ops = [add(b, b, b+2), add(b+1, b+1, b+3), cvt(st, b, b+1)]
        if (t & 3) == 0: ops.append(f"v_min_u32 {v(st)}, -2, {v(st)}")
        return ops
    def pstore(th):
        return f"buffer_store_dwordx4 {v(M+16*th,4)}, {v(vL16)}, {s(sWS,4)}, {s(sPST)} offen offset:{th*1024}"
    pend = []
    for fr in range(16):
        t, U = fr >> 1, fr & 1
        if fr in outstanding:
            k = outstanding.index(fr)
            A_(f"s_waitcnt lgkmcnt({2*(len(outstanding)-k-1)})")
            outstanding = outstanding[k+1:]
        fill = []
        if fr + 7 < 16:
            fill += [frag(fr+7, 0), frag(fr+7, 1)]; outstanding.append(fr + 7)
        if fr == 11: fill.append('s_waitcnt vmcnt(4)')
        if fr == 12: fill.append(pstore(0))
        if fr >= 4 and (fr & 1) == 0:
            pend += tile_post((fr - 4) >> 1)
        vf = pend[:2]; pend = pend[2:]
        smf(M+4*t, OP+4*U, v(FB[fr%7],8), *(fill + vf))
    assert not pend
    mark(12)
    for o in tile_post(6): A_(o)
    A_("s_nop 3")
    for o in tile_post(7): A_(o)
    A_(pstore(1))
    tstamp(3)
    mark(13)
    A_.label('CH_HOP')
    A_(f"s_cmp_eq_u32 {s(sWV)}, {RW}")
    A_(f"s_cbranch_scc0 {NOTRED}")
    for _ in range(d1): A_("s_nop 7")
    if trace:
        A_("s_memtime s[62:63]")
    A_(f"s_mov_b32 {s(sSPIN)}, 0")
    A_("s_mov_b32 s96, 4")
    A_.label(POLLP)
    if cnt: A_("s_add_u32 s81, s81, 1")
    A_(f"s_mov_b32 {s(sT)}, {s(sPRD)}")
    for u in range(8):
        A_(f"buffer_load_dwordx4 {v(PR+4*u,4)}, {v(vRED)}, {s(sWS,4)}, {s(sT)} offen sc1")
        if u < 7: A_(f"s_add_u32 {s(sT)}, {s(sT)}, {4*8192}")
    A_(f"s_add_u32 {s(sSPIN)}, {s(sSPIN)}, 1")
    A_(f"s_cmp_gt_u32 {s(sSPIN)}, {SPIN_MAX}")
    A_(f"s_cbranch_scc1 {ABORT}")
    for u in range(8):
        A_(f"s_waitcnt vmcnt({7-u})")
        c = "0" if u == 0 else v(RD,4)
        A_(f"v_mfma_f32_16x16x32_bf16 {v(RD,4)}, {v(vSEL,4)}, {v(PR+4*u,4)}, {c}")
        if u == 1: A_(f"v_max_u32 {v(vT0)}, {v(PR)}, {v(PR+4)}")
        if u in (3, 5, 7): A_(f"v_max3_u32 {v(vT0)}, {v(vT0)}, {v(PR+4*(u-1))}, {v(PR+4*u)}")
    A_(f"v_cmp_eq_u32 vcc, -1, {v(vT0)}")
    A_("s_nop 5")
    A_(f"s_cbranch_vccnz {POLLP}")
    if trace:
        A_("s_memtime s[64:65]")
        A_(f"s_mov_b32 s68, {s(sSPIN)}")
    A_(cvt(RD, RD, RD+1))
    A_(f"v_min_u32 {v(RD)}, -2, {v(RD)}")
    A_(f"buffer_store_dword {v(RD)}, {v(vMST)}, {s(sWS,4)}, {s(sRWR)} offen")
    tstamp(4)
    A_("s_barrier")
    A_(f"v_mov_b32 {v(PR)}, -1")
    A_(f"buffer_store_dword {v(PR)}, {v(vMST)}, {s(sWS,4)}, {s(sRRS)} offen")
    A_(f"s_branch CH_HK")
    A_.label(NOTRED)
    tstamp(4)
    A_("s_barrier")
    A_.label("CH_HK")
    tstamp(5)
    for k in range(0, 8, 2):
        A_(f"v_mov_b64 {v(VX+k,2)}, {v(VXN+k,2)}") if False else None
    A_(f"v_xor_b32 {v(vKXR)}, {L_KX0 ^ L_KX1}, {v(vKXR)}")
    A_(f"s_xor_b32 {s(sKXD)}, {s(sKXD)}, {L_KX0 ^ L_KX1}")
    A_(f"s_add_u32 {s(sSTEP)}, {s(sSTEP)}, 1")
    A_(f"s_xor_b32 {s(sPST)}, {s(sPST)}, {PART_SLOT}")
    A_(f"s_xor_b32 {s(sPRD)}, {s(sPRD)}, {PART_SLOT}")
    A_(f"s_cmp_lt_u32 {s(sSTEP)}, 63")
    A_(f"s_cselect_b32 {s(sT)}, {32*8192}, 0")
    A_(f"s_add_u32 {s(sKXS)}, {s(sKXS)}, {s(sT)}")
    A_(f"s_add_u32 {s(sVXS)}, {s(sVXS)}, {s(sT)}")
    A_(f"s_add_u32 {s(sKMO)}, {s(sKMO)}, {32*2048}")
    A_(f"s_add_u32 {s(sVMO)}, {s(sVMO)}, {32*2048}")
    A_(f"s_mov_b32 {s(sRRS)}, {s(sRWR)}")
    A_(f"s_add_u32 {s(sRWR)}, {s(sRWR)}, 8192")
    A_(f"s_cmp_ge_u32 {s(sRWR)}, {WS_RING + 3*8192}")
    A_(f"s_cselect_b32 {s(sT)}, {3*8192}, 0")
    A_(f"s_sub_u32 {s(sRWR)}, {s(sRWR)}, {s(sT)}")
    A_(f"s_lshl_b32 {s(sT)}, {s(sWV)}, 11")
    A_(f"s_add_u32 {s(sRRD)}, {s(sRRS)}, {s(sT)}")
    if flags:
        A_(f"s_add_u32 {s(sT)}, {s(sSTEP)}, 2")
        A_(f"s_min_u32 {s(sT)}, {s(sT)}, 64")
        A_(f"s_cmp_le_u32 {s(sT)}, {s(sKVR)}")
        A_("s_cbranch_scc1 CH_KVOK")
        kv_wait(A_, sT, "CH_KVW", ABORT)
        A_.label("CH_KVOK")
    zero(A_, ACC, 24)
    for k in range(4): A_(f"v_mov_b32 {v(KXR+28+k)}, -1")
    A_(f"s_xor_b32 {s(sPRS)}, {s(sPST)}, {PART_SLOT}")
    if timing:
        for k in range(5):
            A_(f"s_sub_u32 {s(sT)}, {s(sTIM+2*(k+1))}, {s(sTIM+2*k)}")
            A_(f"s_add_u32 {s(80+k)}, {s(80+k)}, {s(sT)}")
    for _ in range(d2): A_("s_nop 7")
    A_(f"s_mov_b32 {s(sSPIN)}, 0")
    A_("s_mov_b32 s96, 5")
    A_.label(POLLM)
    if cnt: A_("s_add_u32 s82, s82, 1")
    A_(f"buffer_load_dwordx4 {v(M,4)}, {v(vL16)}, {s(sWS,4)}, {s(sRRD)} offen sc1")
    A_(f"buffer_load_dwordx4 {v(M+4,4)}, {v(vL16)}, {s(sWS,4)}, {s(sRRD)} offen offset:1024 sc1")
    A_(f"s_add_u32 {s(sSPIN)}, {s(sSPIN)}, 1")
    A_(f"s_cmp_gt_u32 {s(sSPIN)}, {SPIN_MAX}")
    A_(f"s_cbranch_scc1 {ABORT}")
    A_("s_waitcnt vmcnt(0)")
    A_(f"v_max_u32 {v(vT0)}, {v(M)}, {v(M+4)}")
    A_(f"v_cmp_eq_u32 vcc, -1, {v(vT0)}")
    A_(f"ds_write_b128 {v(vMW)}, {v(M,4)}")
    A_(f"ds_write_b128 {v(vMW)}, {v(M+4,4)} offset:1024")
    for k in range(0, 8, 2):
        A_(f"v_mov_b64 {v(VX+k,2)}, {v(VXN+k,2)}")
    A_(f"s_cbranch_vccnz {POLLM}")
    if trace:
        A_("s_memtime s[66:67]")
        A_("s_waitcnt lgkmcnt(0)")
        A_(f"s_lshl_b32 {s(sT)}, {s(sH)}, 2"); A_(f"s_add_u32 {s(sT)}, {s(sT)}, {s(sWV)}")
        A_(f"s_lshl_b32 {s(sT)}, {s(sT)}, 6"); A_(f"s_add_u32 {s(sT)}, {s(sT)}, {s(sSTEP)}")
        A_(f"s_lshl_b32 {s(sT)}, {s(sT)}, 5"); A_(f"s_add_u32 {s(sT)}, {s(sT)}, {WS_TIME + 65536}")
        for k, r in enumerate((60, 62, 64, 66, 68, sSPIN)):
            A_(f"v_mov_b32 {v(KXR+k)}, s{r}")
        A_("s_mov_b64 exec, 1")
        A_(f"v_mov_b32 {v(KXR+8)}, 0")
        A_(f"buffer_store_dwordx4 {v(KXR,4)}, {v(KXR+8)}, {s(sWS,4)}, {s(sT)} offen")
        A_(f"buffer_store_dwordx2 {v(KXR+4,2)}, {v(KXR+8)}, {s(sWS,4)}, {s(sT)} offen offset:16")
        A_("s_mov_b64 exec, -1")
    if timing:
        A_(f"s_memtime {s(sT+4,2)}")
        A_("s_waitcnt lgkmcnt(0)")
        A_(f"s_sub_u32 {s(sT)}, {s(sT+4)}, {s(sTIM+10)}")
        A_(f"s_add_u32 {s(85)}, {s(85)}, {s(sT)}")
    A_.label("CH_CUT")
    A_(f"s_cmp_lt_u32 {s(sSTEP)}, {nsteps}")
    A_(f"s_cbranch_scc1 {LOOP}")
    A_(f"s_branch {DONE}")
    A_.label(ABORT)
    A_(f"s_mov_b32 s97, {s(sSTEP)}")
    A_(f"s_mov_b32 {s(sSTEP)}, 0xdead")
    A_.label(DONE)
```

```python
from asmlib import *
from layout import *
from chain2 import srd, bits
from battn import wait_flag
import struct, math
def f2u(x): return struct.unpack("<I", struct.pack("<f", x))[0]

sWS, sDBG, sOUT = 8, 16, 12
sH, sWV = 20, 21
fSEG, fTEAMS = 24, 25
fSPIN = 28
fT = 40
fL16, fQK, fVX, fOUTO, fKMR, fVM, fTH, fCOL = 1, 2, 3, 4, 5, 6, 7, 8
fT0, fT1 = 10, 11
fG = 12
fQ = 16
fK = 48
fKM = 80
fV = 112
fVMo = 120
fSX = 128
fSM = 144
fP = 160
fO = 176
fD = 192
fRAW = 200
L_KMW = 0
L_RED = 8192
L_STG = 16384

def f_consts(A_):
    A_(f"v_lshlrev_b32 {v(fL16)}, 4, v0")
    bits(A_, fQK, [(3,1,12), (5,1,8), (4,1,7), (2,1,6), (0,2,4)], tmp=fT0)
    bits(A_, fVX, [(4,1,10), (5,1,8), (0,4,4)], tmp=fT0)
    bits(A_, fOUTO, [(4,1,10), (5,1,8), (0,4,4)], tmp=fT0)
    A_(f"s_lshl_b32 {s(fT)}, {s(sWV)}, 11")
    bits(A_, fKMR, [(5,1,6), (2,2,4), (0,1,3)], add_s=fT, tmp=fT0)
    A_(f"s_lshl_b32 {s(fT)}, {s(sWV)}, 9")
    bits(A_, fVM, [(0,5,4), (5,1,3)], add_s=fT, tmp=fT0)
    A_(f"v_and_b32 {v(fTH)}, 31, v0")
    A_(f"v_lshrrev_b32 {v(fT0)}, 5, v0")
    A_(f"v_lshlrev_b32 {v(fT0)}, 2, {v(fT0)}")
    A_(f"v_sub_u32 {v(fTH)}, {v(fTH)}, {v(fT0)}")
    A_(f"s_lshl_b32 {s(fT)}, {s(sH)}, 5")
    bits(A_, fCOL, [(4,2,12), (0,4,1)], add_s=fT, tmp=fT0)

def f_load_weights(A_, P):
    t = fT
    vG, vSW, vSR = fRAW, fRAW+1, fRAW+2
    bits(A_, vG, [(1,5,10), (0,1,4)], tmp=fT0)
    A_(f"s_lshl_b32 {s(t)}, {s(sWV)}, 13")
    A_(f"s_add_u32 {s(t)}, {s(t)}, {L_STG}")
    A_(f"v_add_u32 {v(vSW)}, {s(t)}, {v(fL16)}")
    bits(A_, vSR, [(5,1,9), (4,1,7), (2,2,5), (0,2,3)], add_s=t, tmp=fT0)
    srd(A_, 48, P['Wo'], 4*MB)
    srd(A_, 52, P['wo'], 512*1024)
    A_(f"s_lshl_b32 {s(t)}, {s(sWV)}, 20")
    A_(f"s_lshl_b32 {s(t+1)}, {s(sH)}, 5")
    A_(f"s_add_u32 {s(t)}, {s(t)}, {s(t+1)}")
    for ks in range(32):
        A_(f"buffer_load_dwordx4 {a(4*ks,4)}, {v(vG)}, s[48:51], {s(t)} offen")
        A_(f"s_add_u32 {s(t)}, {s(t)}, 32768")
    A_(f"s_lshl_b32 {s(t)}, {s(sWV)}, 17")
    A_(f"s_add_u32 {s(t)}, {s(t)}, {s(t+1)}")
    for ks in range(32, 36):
        A_(f"buffer_load_dwordx4 {a(4*ks,4)}, {v(vG)}, s[52:55], {s(t)} offen")
        A_(f"s_add_u32 {s(t)}, {s(t)}, 32768")
    done = 0
    for b0 in range(0, 36, 8):
        n = min(8, 36 - b0)
        A_(f"s_waitcnt vmcnt({36 - b0 - n})")
        for i in range(n): A_(f"ds_write_b128 {v(vSW)}, {a(4*(b0+i),4)} offset:{i*1024}")
        A_("s_waitcnt lgkmcnt(0)")
        for i in range(n):
            for m in range(2):
                A_(f"ds_read_b64_tr_b16 {a(4*(b0+i)+2*m,2)}, {v(vSR)} offset:{i*1024 + m*256}")
        A_("s_waitcnt lgkmcnt(0)")

def wait_line(A_, off_s, pfx, abort):
    A_(f"s_mov_b32 {s(fSPIN)}, 0")
    A_(f"v_and_b32 {v(fT1)}, 31, v0")
    A_(f"v_lshlrev_b32 {v(fT1)}, 2, {v(fT1)}")
    A_.label(f"{pfx}_WL")
    A_(f"buffer_load_dword {v(fT0)}, {v(fT1)}, {s(sWS,4)}, {s(off_s)} offen sc1")
    A_(f"s_add_u32 {s(fSPIN)}, {s(fSPIN)}, 1")
    A_(f"s_cmp_gt_u32 {s(fSPIN)}, 4000000")
    A_(f"s_cbranch_scc1 {abort}")
    A_("s_waitcnt vmcnt(0)")
    A_(f"v_cmp_eq_u32 vcc, 0, {v(fT0)}")
    A_(f"s_cbranch_vccz {pfx}_WLD")
    A_("s_sleep 2")
    A_(f"s_branch {pfx}_WL")
    A_.label(f"{pfx}_WLD")

def f_role(A_, P, waits=True, abort="K_ABORT"):
    t = fT
    f_consts(A_)
    srd(A_, sOUT, P['out'], 2*MB)
    f_load_weights(A_, P)
    A_.label("F_LOOP")
    A_(f"s_cmp_ge_u32 {s(fSEG)}, 64")
    A_("s_cbranch_scc1 F_DONE")
    if waits:
        for mi in range(3):
            A_(f"s_add_u32 {s(t)}, {s(sH)}, {32*mi}")
            A_(f"s_lshl_b32 {s(t)}, {s(t)}, 1")
            A_(f"s_and_b32 {s(t+1)}, {s(fSEG)}, 1")
            A_(f"s_add_u32 {s(t)}, {s(t)}, {s(t+1)}")
            A_(f"s_lshl_b32 {s(t)}, {s(t)}, 7")
            A_(f"s_add_u32 {s(t)}, {s(t)}, {FL_G}")
            A_(f"s_lshr_b32 {s(t+1)}, {s(fSEG)}, 1")
            A_(f"s_add_u32 {s(t+1)}, {s(t+1)}, 1")
            wait_flag(A_, t, s(t+1), f"FW{mi}", abort, tv=fT0, tv2=fT1, spin=fSPIN)
        A_(f"s_lshl_b32 {s(t)}, {s(sH)}, 7")
        A_(f"s_add_u32 {s(t)}, {s(t)}, {FL_KM}")
        A_(f"s_add_u32 {s(t+1)}, {s(fSEG)}, 1")
        wait_flag(A_, t, s(t+1), "FWM", abort, tv=fT0, tv2=fT1, spin=fSPIN)
    A_(f"s_lshl_b32 {s(t)}, {s(fSEG)}, 5")
    A_(f"s_add_u32 {s(t)}, {s(t)}, {s(sH)}")
    A_(f"s_lshl_b32 {s(t+1)}, {s(t)}, 11")
    A_(f"s_add_u32 {s(t+2)}, {s(t+1)}, {WS_KM}")
    A_(f"s_add_u32 {s(t+3)}, {s(t+1)}, {WS_VM}")
    A_(f"s_lshl_b32 {s(t+4)}, {s(sWV)}, 11")
    A_(f"s_mov_b32 m0, {s(t+4)}")
    A_(f"s_add_u32 {s(t+4)}, {s(t+4)}, 1024")
    A_(f"buffer_load_dwordx4 {v(fL16)}, {s(sWS,4)}, {s(t+2)} offen sc1 lds")
    A_(f"s_mov_b32 m0, {s(t+4)}")
    A_(f"s_add_u32 {s(t+2)}, {s(t+2)}, 1024")
    A_(f"buffer_load_dwordx4 {v(fL16)}, {s(sWS,4)}, {s(t+2)} offen sc1 lds")
    A_(f"s_lshl_b32 {s(t)}, {s(t)}, 13")
    A_(f"s_add_u32 {s(t+1)}, {s(t)}, {WS_QX}")
    A_(f"s_add_u32 {s(t+2)}, {s(t)}, {WS_KX}")
    A_(f"s_add_u32 {s(t+4)}, {s(t)}, {WS_VX}")
    A_(f"s_lshl_b32 {s(t+5)}, {s(sWV)}, 11")
    A_(f"s_add_u32 {s(t+4)}, {s(t+4)}, {s(t+5)}")
    for u in range(4):
        for ab in range(2):
            A_(f"buffer_load_dwordx4 {v(fQ+8*u+4*ab,4)}, {v(fQK)}, {s(sWS,4)}, {s(t+1)} offen offset:{u*1024+ab*512} sc1")
    for u in range(4):
        for ab in range(2):
            A_(f"buffer_load_dwordx4 {v(fK+8*u+4*ab,4)}, {v(fQK)}, {s(sWS,4)}, {s(t+2)} offen offset:{u*1024+ab*512} sc1")
    for ab in range(2):
        A_(f"buffer_load_dwordx4 {v(fV+4*ab,4)}, {v(fVX)}, {s(sWS,4)}, {s(t+4)} offen offset:{ab*512} sc1")
    A_(f"buffer_load_dwordx2 {v(fVMo,2)}, {v(fVM)}, {s(sWS,4)}, {s(t+3)} offen sc1")
    A_(f"s_lshl_b32 {s(t)}, {s(fSEG)}, 7")
    A_(f"s_add_u32 {s(t)}, {s(t)}, {WS_G}")
    A_(f"v_and_b32 {v(fT0)}, 31, v0")
    A_(f"v_lshlrev_b32 {v(fT0)}, 2, {v(fT0)}")
    A_(f"buffer_load_dword {v(fG)}, {v(fT0)}, {s(sWS,4)}, {s(t)} offen sc1")
    A_(f"v_mov_b64 {v(fVMo+2,2)}, 0")
    A_(f"v_mov_b64 {v(fP+10,2)}, 0")
    A_("s_waitcnt vmcnt(20)")
    for u in range(4):
        for ab in range(2):
            for m in range(2):
                A_(f"ds_read_b64_tr_b16 {v(fKM+8*u+4*ab+2*m,2)}, {v(fKMR)} offset:{512*u+256*ab+128*m}")
    A_("s_waitcnt vmcnt(4)")
    for k in range(8):
        c = "0" if k == 0 else v(fSX,16)
        A_(f"v_mfma_f32_32x32x16_bf16 {v(fSX,16)}, {v(fK+4*k,4)}, {v(fQ+4*k,4)}, {c}")
    A_("s_waitcnt lgkmcnt(0)")
    for k in range(8):
        c = "0" if k == 0 else v(fSM,16)
        A_(f"v_mfma_f32_32x32x16_bf16 {v(fSM,16)}, {v(fKM+4*k,4)}, {v(fQ+4*k,4)}, {c}")
    A_(f"v_mov_b32 {v(fT1)}, 0xff800000")
    for r in range(16):
        c = 8*(r >> 2) + (r & 3)
        A_(f"v_cmp_gt_i32 vcc, {c}, {v(fTH)}")
        A_("s_nop 1")
        A_(f"v_cndmask_b32 {v(fSX+r)}, {v(fSX+r)}, {v(fT1)}, vcc")
    A_(f"v_max3_f32 {v(fT0)}, {v(fSM)}, {v(fSM+1)}, {v(fSM+2)}")
    A_(f"v_max3_f32 {v(fT0)}, {v(fT0)}, {v(fSM+3)}, {v(fSX)}")
    for r in range(1, 15, 2): A_(f"v_max3_f32 {v(fT0)}, {v(fT0)}, {v(fSX+r)}, {v(fSX+r+1)}")
    A_(f"v_max_f32 {v(fT0)}, {v(fT0)}, {v(fSX+15)}")
    A_(f"v_mov_b32 {v(fT1)}, {v(fT0)}")
    A_("s_nop 1")
    A_(f"v_permlane32_swap_b32 {v(fT0)}, {v(fT1)}")
    A_("s_nop 0")
    A_(f"v_max_f32 {v(fT0)}, {v(fT0)}, {v(fT1)}")
    c = 128**-0.5*math.log2(math.e)
    A_(f"s_mov_b32 {s(t)}, {hex(f2u(c))}")
    A_(f"v_mul_f32 {v(fT0)}, {s(t)}, {v(fT0)}")
    for r in list(range(fSX, fSX+16)) + list(range(fSM, fSM+4)):
        A_(f"v_fma_f32 {v(r)}, {v(r)}, {s(t)}, -{v(fT0)}")
    for r in list(range(fSX, fSX+16)) + list(range(fSM, fSM+4)):
        A_(f"v_exp_f32 {v(r)}, {v(r)}")
    A_("s_nop 0")
    for r in range(8): A_(f"v_cvt_pk_bf16_f32 {v(fP+r)}, {v(fSX+2*r)}, {v(fSX+2*r+1)}")
    A_(f"v_cvt_pk_bf16_f32 {v(fP+8)}, {v(fSM)}, {v(fSM+1)}")
    A_(f"v_cvt_pk_bf16_f32 {v(fP+9)}, {v(fSM+2)}, {v(fSM+3)}")
    A_("s_waitcnt vmcnt(0)")
    A_(f"v_mfma_f32_32x32x16_bf16 {v(fO,16)}, {v(fV,4)}, {v(fP,4)}, 0")
    A_(f"v_mfma_f32_32x32x16_bf16 {v(fO,16)}, {v(fV+4,4)}, {v(fP+4,4)}, {v(fO,16)}")
    A_(f"v_mfma_f32_32x32x16_bf16 {v(fO,16)}, {v(fVMo,4)}, {v(fP+8,4)}, {v(fO,16)}")
    A_(f"v_add_f32 {v(fT0)}, {v(fSM)}, {v(fSM+1)}")
    A_(f"v_add_f32 {v(fT1)}, {v(fSM+2)}, {v(fSM+3)}")
    for r in range(0, 16, 2):
        A_(f"v_add_f32 {v(fT0)}, {v(fT0)}, {v(fSX+r)}")
        A_(f"v_add_f32 {v(fT1)}, {v(fT1)}, {v(fSX+r+1)}")
    A_(f"v_add_f32 {v(fT0)}, {v(fT0)}, {v(fT1)}")
    A_(f"v_mov_b32 {v(fT1)}, {v(fT0)}")
    A_("s_nop 1")
    A_(f"v_permlane32_swap_b32 {v(fT0)}, {v(fT1)}")
    A_("s_nop 0")
    A_(f"v_add_f32 {v(fT0)}, {v(fT0)}, {v(fT1)}")
    A_(f"v_rcp_f32 {v(fT0)}, {v(fT0)}")
    A_("s_nop 0")
    A_(f"v_mul_f32 {v(fT0)}, {v(fT0)}, {v(fG)}")
    A_("s_nop 3")
    for r in range(16): A_(f"v_mul_f32 {v(fO+r)}, {v(fO+r)}, {v(fT0)}")
    for r in range(8): A_(f"v_cvt_pk_bf16_f32 {v(fP+r)}, {v(fO+2*r)}, {v(fO+2*r+1)}")
    A_(f"s_mul_i32 {s(t)}, {s(fSEG)}, {O_SEG}")
    A_(f"s_add_u32 {s(t+6)}, {s(t)}, {WS_O}")
    A_(f"s_lshl_b32 {s(t+1)}, {s(sH)}, 2")
    A_(f"s_add_u32 {s(t+1)}, {s(t+1)}, {s(sWV)}")
    A_(f"s_lshl_b32 {s(t+1)}, {s(t+1)}, 11")
    A_(f"s_add_u32 {s(t)}, {s(t+6)}, {s(t+1)}")
    A_(f"buffer_store_dwordx4 {v(fP,4)}, {v(fOUTO)}, {s(sWS,4)}, {s(t)} offen")
    A_(f"buffer_store_dwordx4 {v(fP+4,4)}, {v(fOUTO)}, {s(sWS,4)}, {s(t)} offen offset:512")
    A_("s_waitcnt vmcnt(0)")
    A_("s_barrier")
    A_(f"s_lshl_b32 {s(t)}, {s(fSEG)}, 7")
    A_(f"s_add_u32 {s(t+5)}, {s(t)}, {FL_OA}")
    A_(f"s_cmp_eq_u32 {s(sWV)}, 0")
    A_("s_cbranch_scc0 F_NOFL")
    A_(f"s_lshl_b32 {s(t+1)}, {s(sH)}, 2")
    A_(f"v_mov_b32 {v(fT0)}, 1")
    A_(f"v_mov_b32 {v(fT1)}, {s(t+1)}")
    A_("s_mov_b64 exec, 1")
    A_(f"buffer_store_dword {v(fT0)}, {v(fT1)}, {s(sWS,4)}, {s(t+5)} offen")
    A_("s_mov_b64 exec, -1")
    A_.label("F_NOFL")
    wait_line(A_, t+5, "FA", abort)
    if waits:
        A_(f"s_lshl_b32 {s(t)}, {s(fSEG)}, 7")
        A_(f"s_add_u32 {s(t)}, {s(t)}, {FL_OB}")
        wait_line(A_, t, "FB", abort)
    A_(f"s_lshl_b32 {s(t)}, {s(sWV)}, 16")
    A_(f"s_add_u32 {s(t)}, {s(t)}, {s(t+6)}")
    A_(f"s_lshl_b32 {s(t+1)}, {s(sWV)}, 13")
    A_(f"s_add_u32 {s(t+1)}, {s(t+1)}, {s(t+6)}")
    A_(f"s_add_u32 {s(t+1)}, {s(t+1)}, {128*2048}")
    RING = 8
    AF = fQ
    def aload(ks):
        b = AF + 8*(ks % RING)
        if ks < 32: so, off = s(t), None
        else: so, off = s(t+1), None
        A_(f"buffer_load_dwordx4 {v(b,4)}, {v(fL16)}, {s(sWS,4)}, {so} offen sc1")
        A_(f"buffer_load_dwordx4 {v(b+4,4)}, {v(fL16)}, {s(sWS,4)}, {so} offen offset:1024 sc1")
        A_(f"s_add_u32 {so}, {so}, 2048")
    for ks in range(RING): aload(ks)
    for ks in range(36):
        left = min(36, ks + RING) - ks - 1
        A_(f"s_waitcnt vmcnt({2*left})")
        b = AF + 8*(ks % RING)
        for T in range(2):
            c = "0" if ks == 0 else v(fD+4*T,4)
            A_(f"v_mfma_f32_16x16x32_bf16 {v(fD+4*T,4)}, {v(b+4*T,4)}, {a(4*ks,4)}, {c}")
        if ks + RING < 36: aload(ks + RING)
    A_(f"s_lshl_b32 {s(t)}, {s(sWV)}, 11")
    A_(f"s_add_u32 {s(t)}, {s(t)}, {L_RED}")
    A_(f"v_add_u32 {v(fT0)}, {s(t)}, {v(fL16)}")
    A_("s_nop 7")
    A_(f"ds_write_b128 {v(fT0)}, {v(fD,4)}")
    A_(f"ds_write_b128 {v(fT0)}, {v(fD+4,4)} offset:1024")
    A_("s_waitcnt lgkmcnt(0)")
    A_("s_barrier")
    A_(f"s_cmp_lt_u32 {s(sWV)}, 2")
    A_("s_cbranch_scc0 F_NOST")
    A_(f"s_lshl_b32 {s(t)}, {s(sWV)}, 10")
    A_(f"s_add_u32 {s(t)}, {s(t)}, {L_RED}")
    A_(f"v_add_u32 {v(fT0)}, {s(t)}, {v(fL16)}")
    for k in range(4): A_(f"ds_read_b128 {v(fQ+4*k,4)}, {v(fT0)} offset:{k*2048}")
    A_("s_waitcnt lgkmcnt(0)")
    for r in range(4):
        A_(f"v_add_f32 {v(fQ+r)}, {v(fQ+r)}, {v(fQ+4+r)}")
        A_(f"v_add_f32 {v(fQ+8+r)}, {v(fQ+8+r)}, {v(fQ+12+r)}")
    for r in range(4): A_(f"v_add_f32 {v(fQ+r)}, {v(fQ+r)}, {v(fQ+8+r)}")
    for r in range(4): A_(f"v_cvt_pk_bf16_f32 {v(fQ+r)}, {v(fQ+r)}, {v(fQ+r)}")
    A_(f"s_lshl_b32 {s(t)}, {s(fSEG)}, 15")
    A_(f"s_lshl_b32 {s(t+1)}, {s(sWV)}, 14")
    A_(f"s_add_u32 {s(t)}, {s(t)}, {s(t+1)}")
    for r in range(4):
        A_(f"buffer_store_short {v(fQ+r)}, {v(fCOL)}, {s(sOUT,4)}, {s(t)} offen offset:{r*1024}")
    A_.label("F_NOST")
    A_("s_barrier")
    A_(f"s_add_u32 {s(fSEG)}, {s(fSEG)}, {s(fTEAMS)}")
    A_("s_branch F_LOOP")
    A_.label("F_DONE")
    A_("s_waitcnt vmcnt(0)")
```

```python
from asmlib import *
from layout import *
from chain2 import srd, bits
import struct, math
def f2u(x): return struct.unpack("<I", struct.pack("<f", x))[0]

gL16 = 1; gXR = 2
gXG = 10
gOUT = 18; gFV = 19; gT0 = 20; gT1 = 21
gACC = 24
gXF = 40
gPK = 56
gRAW = 64
sWS, sX = 8, 12
sWSRD = 16
sWV = 21
gS, gN, gSEG, gSTEP = 22, 23, 24, 25
gOUTB, gOUTS = 26, 27
gFLAG = 28
gBUF, gBUFN = 29, 30
gXS = 31
gROWS, gCOLB = 32, 33
gT = 40
G_STG = 98304
XBUF = 32768

def g_consts(A_):
    A_(f"v_lshlrev_b32 {v(gL16)}, 4, v0")
    A_(f"s_cmp_eq_u32 {s(sWV)}, 0")
    A_(f"s_cselect_b32 {s(gT)}, 0, 0x40000000")
    A_(f"v_mov_b32 {v(gFV)}, {s(gT)}")
    A_(f"v_and_b32 {v(gT0)}, 31, v0")
    A_(f"v_lshlrev_b32 {v(gXR)}, 10, {v(gT0)}")
    A_(f"v_lshrrev_b32 {v(gT1)}, 5, v0")
    A_(f"v_and_b32 {v(gT0)}, 15, v0")
    A_(f"v_xor_b32 {v(gT0)}, {v(gT0)}, {v(gT1)}")
    for b in range(7, -1, -1):
        A_(f"v_xor_b32 {v(gT1)}, {2*b}, {v(gT0)}")
        A_(f"v_lshl_add_u32 {v(gXR+b)}, {v(gT1)}, 4, {v(gXR)}")
    A_(f"s_and_b32 {s(gT)}, {s(sWV)}, 1")
    A_(f"s_lshl_b32 {s(gT)}, {s(gT)}, 3")
    for i in range(8):
        A_(f"s_add_u32 {s(gT+1)}, {s(gT)}, {i}")
        A_(f"v_xor_b32 {v(gT0)}, {s(gT+1)}, v0")
        A_(f"v_and_b32 {v(gT0)}, 15, {v(gT0)}")
        A_(f"v_and_b32 {v(gT1)}, 48, v0")
        A_(f"v_or_b32 {v(gT0)}, {v(gT0)}, {v(gT1)}")
        A_(f"v_lshlrev_b32 {v(gXG+i)}, 4, {v(gT0)}")

def g_load_weights(A_, small=None):
    vG, vSW, vSR = gRAW, gRAW+1, gRAW+2
    t = gT
    if small is None:
        A_(f"v_lshrrev_b32 {v(gT0)}, 2, v0")
        A_(f"v_mul_lo_u32 {v(vG)}, {v(gT0)}, {s(gROWS)}")
        A_(f"v_and_b32 {v(gT0)}, 3, v0")
        A_(f"v_lshl_add_u32 {v(vG)}, {v(gT0)}, 4, {v(vG)}")
    else:
        bits(A_, vG, [(2,4,5), (0,1,4)], tmp=gT0)
        A_(f"v_bfe_u32 {v(gT0)}, v0, 1, 1")
        A_(f"v_lshl_add_u32 {v(vG)}, {v(gT0)}, 24, {v(vG)}")
    A_(f"s_lshl_b32 {s(t)}, {s(sWV)}, 13")
    A_(f"s_add_u32 {s(t)}, {s(t)}, {G_STG}")
    bits(A_, vSW, [(4,2,8), (1,1,7), (2,2,5), (0,1,4)], add_s=t, tmp=gT0)
    bits(A_, vSR, [(5,1,9), (4,1,7), (2,2,5), (0,2,3)], add_s=t, tmp=gT0)
    A_(f"s_lshl_b32 {s(t+1)}, {s(gROWS)}, 4")
    A_(f"s_mov_b32 {s(t)}, {s(gCOLB)}")
    for b in range(4):
        for i in range(8):
            A_(f"buffer_load_dwordx4 {a(32*b+4*i,4)}, {v(vG)}, {s(sWSRD,4)}, {s(t)} offen")
            A_(f"s_add_u32 {s(t)}, {s(t)}, {s(t+1)}")
    if small is not None:
        vGG = gRAW+3
        bits(A_, vGG, [(2,4,1)], tmp=gT0)
        A_(f"v_and_b32 {v(gT0)}, 3, v0")
        A_(f"v_cmp_ne_u32 vcc, 2, {v(gT0)}")
        A_(f"v_mov_b32 {v(gT1)}, 0x1000000")
        A_("s_nop 0")
        A_(f"v_cndmask_b32 {v(vGG)}, {v(vGG)}, {v(gT1)}, vcc")
        A_(f"s_cmp_eq_u32 {s(sWV)}, 0")
        A_(f"s_cbranch_scc0 {small}_NOGATE")
        for b in range(4):
            for i in range(8):
                A_(f"buffer_load_ushort {v(gRAW+8+8*b+i)}, {v(vGG)}, s[48:51], 0 offen offset:{(128*b+16*i)*2}")
        A_("s_waitcnt vmcnt(0)")
        for b in range(4):
            for i in range(8):
                A_(f"v_accvgpr_read_b32 {v(gT0)}, {a(32*b+4*i)}")
                A_(f"v_or_b32 {v(gT0)}, {v(gT0)}, {v(gRAW+8+8*b+i)}")
                A_(f"v_accvgpr_write_b32 {a(32*b+4*i)}, {v(gT0)}")
        A_("s_nop 1")
        A_.label(f"{small}_NOGATE")
        A_("s_waitcnt vmcnt(0)")
    for b in range(4):
        if small is None: A_(f"s_waitcnt vmcnt({8*(3-b)})")
        for i in range(8):
            A_(f"ds_write_b128 {v(vSW)}, {a(32*b+4*i,4)} offset:{i*1024}")
        A_("s_waitcnt lgkmcnt(0)")
        for kk in range(8):
            for m in range(2):
                A_(f"ds_read_b64_tr_b16 {a(32*b+4*kk+2*m,2)}, {v(vSR)} offset:{kk*1024+m*256}")
        A_("s_waitcnt lgkmcnt(0)")

def g_stage(A_, buf_s):
    t = gT
    A_(f"s_lshl_b32 {s(t)}, {s(sWV)}, 13")
    A_(f"s_add_u32 {s(t+1)}, {s(t)}, {s(gXS)}")
    A_(f"s_add_u32 {s(t)}, {s(t)}, {s(buf_s)}")
    for i in range(8):
        A_(f"s_mov_b32 m0, {s(t)}")
        if i < 7: A_(f"s_add_u32 {s(t)}, {s(t)}, 1024")
        else: A_("s_nop 0")
        A_(f"buffer_load_dwordx4 {v(gXG+i)}, {s(sX,4)}, {s(t+1)} offen lds")
        if i < 7: A_(f"s_add_u32 {s(t+1)}, {s(t+1)}, 1024")

def g_loop(A_, kind, pfx, nstores):
    t = gT
    L = lambda x: f"{pfx}_{x}"
    A_(f"s_mov_b32 {s(gBUF)}, 0")
    A_(f"s_lshl_b32 {s(gXS)}, {s(gSEG)}, 15")
    A_(f"s_mov_b32 {s(gBUFN)}, 0")
    g_stage(A_, gBUFN)
    A_(f"s_lshl_b32 {s(t+2)}, {s(gSTEP)}, 15")
    A_(f"s_add_u32 {s(gXS)}, {s(gXS)}, {s(t+2)}")
    A_(f"s_mov_b32 {s(gBUFN)}, {XBUF}")
    g_stage(A_, gBUFN)
    for k in range(nstores):
        pass
    A_(f"s_mov_b32 {s(gS)}, 0")
    A_("s_waitcnt vmcnt(8)")
    A_(f"s_branch {L('ENTER')}")
    A_.label(L("LOOP"))
    A_(f"s_waitcnt vmcnt({1 + 8 + nstores})")
    A_.label(L("ENTER"))
    A_("s_barrier")
    A_(f"s_max_u32 {s(t)}, {s(gS)}, 1")
    A_(f"s_sub_u32 {s(t)}, {s(t)}, 1")
    A_(f"v_mov_b32 {v(gT0)}, {s(t)}")
    A_("s_mov_b64 exec, 1")
    A_(f"buffer_store_dword {v(gT0)}, {v(gFV)}, {s(sWS,4)}, {s(gFLAG)} offen sc1")
    A_("s_mov_b64 exec, -1")
    A_(f"s_lshl_b32 {s(t+2)}, {s(gSTEP)}, 15")
    A_(f"s_add_u32 {s(gXS)}, {s(gXS)}, {s(t+2)}")
    A_(f"s_add_u32 {s(gBUFN)}, {s(gBUFN)}, {XBUF}")
    A_(f"s_cmp_ge_u32 {s(gBUFN)}, {3*XBUF}")
    A_(f"s_cselect_b32 {s(t+2)}, {3*XBUF}, 0")
    A_(f"s_sub_u32 {s(gBUFN)}, {s(gBUFN)}, {s(t+2)}")
    g_stage(A_, gBUFN)
    def xread(kk): return f"ds_read_b128 {v(gXF+4*(kk&3),4)}, {v(gXR+(kk&7))} offset:{(kk>>3)*256}"
    for kk in range(4): A_(xread(kk))
    def body(orient):
        for kk in range(32):
            A_(f"s_waitcnt lgkmcnt({min(3, 31-kk)})")
            c = "0" if kk == 0 else v(gACC,16)
            if orient == 'KQ':
                A_(f"v_mfma_f32_32x32x16_bf16 {v(gACC,16)}, {a(4*kk,4)}, {v(gXF+4*(kk&3),4)}, {c}")
            else:
                A_(f"v_mfma_f32_32x32x16_bf16 {v(gACC,16)}, {v(gXF+4*(kk&3),4)}, {a(4*kk,4)}, {c}")
            if kk + 4 < 32: A_(xread(kk+4))
    if kind == 'SM':
        A_(f"s_cmp_eq_u32 {s(sWV)}, 1")
        A_(f"s_cbranch_scc1 {L('SMV')}")
        body('KQ')
        A_(f"s_branch {L('SMJ')}")
        A_.label(L("SMV"))
        body('V')
        A_.label(L("SMJ"))
    else:
        body('V' if kind == 'V' else 'KQ')
    A_(f"s_add_u32 {s(gBUF)}, {s(gBUF)}, {XBUF}")
    A_(f"s_cmp_ge_u32 {s(gBUF)}, {3*XBUF}")
    A_(f"s_mov_b32 {s(t)}, {XBUF}")
    A_(f"s_cselect_b32 {s(t)}, {(-2*XBUF) & 0xffffffff}, {s(t)}")
    A_(f"s_cselect_b32 {s(t+1)}, 0, {s(gBUF)}")
    A_(f"s_mov_b32 {s(gBUF)}, {s(t+1)}")
    for b in range(8): A_(f"v_add_u32 {v(gXR+b)}, {s(t)}, {v(gXR+b)}")
    A_("s_nop 3")
    if kind == 'QB':
        cq = 0.25*math.log2(math.e)
        A_(f"s_mov_b32 {s(t)}, {hex(f2u(cq))}")
        for r in range(16): A_(f"v_mul_f32 {v(gACC+r)}, {s(t)}, {v(gACC+r)}")
    if kind == 'SM':
        A_(f"v_mul_f32 {v(gT0)}, {hex(f2u(-math.log2(math.e)))}, {v(gACC+8)}")
        A_(f"v_exp_f32 {v(gT0)}, {v(gT0)}")
        A_("s_nop 0")
        A_(f"v_add_f32 {v(gT0)}, 1.0, {v(gT0)}")
        A_(f"v_rcp_f32 {v(gT0)}, {v(gT0)}")
    for j in range(8): A_(f"v_cvt_pk_bf16_f32 {v(gPK+j)}, {v(gACC+2*j)}, {v(gACC+2*j+1)}")
    A_(f"s_mul_i32 {s(t)}, {s(gSEG)}, {s(gOUTS)}")
    A_(f"s_add_u32 {s(t)}, {s(t)}, {s(gOUTB)}")
    if kind in ('KQ', 'V'):
        A_(f"buffer_store_dwordx4 {v(gPK,4)}, {v(gOUT)}, {s(sWS,4)}, {s(t)} offen sc1")
        A_(f"buffer_store_dwordx4 {v(gPK+4,4)}, {v(gOUT)}, {s(sWS,4)}, {s(t)} offen offset:512 sc1")
    elif kind == 'QB':
        A_(f"buffer_store_dwordx4 {v(gPK,4)}, {v(gL16)}, {s(sWS,4)}, {s(t)} offen sc1")
        A_(f"buffer_store_dwordx4 {v(gPK+4,4)}, {v(gL16)}, {s(sWS,4)}, {s(t)} offen offset:1024 sc1")
    else:
        A_(f"s_lshl_b32 {s(t)}, {s(gSEG)}, 10")
        A_(f"s_cmp_eq_u32 {s(sWV)}, 1")
        A_(f"s_cbranch_scc1 {L('STV')}")
        A_(f"s_cmp_eq_u32 {s(sWV)}, 0")
        A_(f"s_cbranch_scc0 {L('STN')}")
        A_(f"s_add_u32 {s(t+1)}, {s(t)}, {WS_KB}")
        A_(f"buffer_store_dwordx4 {v(gPK,4)}, {v(gL16)}, {s(sWS,4)}, {s(t+1)} offen sc1")
        A_(f"s_lshl_b32 {s(t+1)}, {s(gSEG)}, 7")
        A_(f"s_add_u32 {s(t+1)}, {s(t+1)}, {WS_G}")
        A_(f"v_lshlrev_b32 {v(gT1)}, 2, v0")
        A_("s_mov_b64 exec, 0xffffffff")
        A_(f"buffer_store_dword {v(gT0)}, {v(gT1)}, {s(sWS,4)}, {s(t+1)} offen sc1")
        A_("s_mov_b64 exec, -1")
        A_(f"s_branch {L('STD')}")
        A_.label(L("STV"))
        A_(f"s_add_u32 {s(t+1)}, {s(t)}, {WS_VB}")
        A_(f"s_mov_b32 {s(t+2)}, 0x0000ffff")
        A_(f"s_mov_b32 {s(t+3)}, 0x0000ffff")
        A_(f"s_mov_b64 exec, {s(t+2,2)}")
        A_(f"buffer_store_dwordx4 {v(gPK,4)}, {v(gOUT)}, {s(sWS,4)}, {s(t+1)} offen sc1")
        A_(f"buffer_store_dwordx4 {v(gPK+4,4)}, {v(gOUT)}, {s(sWS,4)}, {s(t+1)} offen offset:512 sc1")
        A_("s_mov_b64 exec, -1")
        A_(f"s_branch {L('STD')}")
        A_.label(L("STN"))
        A_("s_waitcnt vmcnt(0)")
        A_.label(L("STD"))
    A_(f"s_add_u32 {s(gSEG)}, {s(gSEG)}, {s(gSTEP)}")
    A_(f"s_add_u32 {s(gS)}, {s(gS)}, 1")
    A_(f"s_cmp_lt_u32 {s(gS)}, {s(gN)}")
    A_(f"s_cbranch_scc1 {L('LOOP')}")
    A_("s_waitcnt vmcnt(0)")
    A_("s_barrier")
    A_(f"s_cmp_eq_u32 {s(sWV)}, 0")
    A_(f"s_cbranch_scc0 {L('END')}")
    A_(f"v_mov_b32 {v(gT0)}, {s(gN)}")
    A_("s_mov_b64 exec, 1")
    A_(f"buffer_store_dword {v(gT0)}, {v(gFV)}, {s(sWS,4)}, {s(gFLAG)} offen sc1")
    A_("s_mov_b64 exec, -1")
    A_("s_waitcnt vmcnt(0)")
    A_.label(L("END"))

def g_role(A_, wi, P):
    t = gT
    g_consts(A_)
    srd(A_, sX, P['x'], 2*MB)
    A_(f"s_lshl_b32 {s(gFLAG)}, {s(wi)}, 7")
    A_(f"s_add_u32 {s(gFLAG)}, {s(gFLAG)}, {FL_G}")
    A_(f"s_cmp_lt_u32 {s(wi)}, 192")
    A_("s_cbranch_scc0 G_BROLE")
    A_(f"s_lshr_b32 {s(t+4)}, {s(wi)}, 1")
    A_(f"s_and_b32 {s(gSEG)}, {s(wi)}, 1")
    A_(f"s_mov_b32 {s(gSTEP)}, 2")
    A_(f"s_mov_b32 {s(gN)}, 32")
    A_(f"s_and_b32 {s(t+5)}, {s(t+4)}, 31")
    A_(f"s_lshr_b32 {s(t+4)}, {s(t+4)}, 5")
    A_(f"s_mov_b32 {s(gROWS)}, 8192")
    A_(f"s_lshl_b32 {s(gCOLB)}, {s(t+5)}, 8")
    A_(f"s_lshl_b32 {s(t)}, {s(sWV)}, 6")
    A_(f"s_add_u32 {s(gCOLB)}, {s(gCOLB)}, {s(t)}")
    A_(f"s_mov_b32 {s(gOUTS)}, {32*8192}")
    A_(f"s_lshl_b32 {s(gOUTB)}, {s(t+5)}, 13")
    A_(f"s_cmp_eq_u32 {s(t+4)}, 1")
    A_("s_cbranch_scc1 G_VROLE")
    A_(f"s_cmp_eq_u32 {s(t+4)}, 0")
    A_(f"s_cselect_b32 {s(t)}, {s(P['Wk'])}, {s(P['Wq'])}")
    A_(f"s_cselect_b32 {s(t+1)}, {s(P['Wk']+1)}, {s(P['Wq']+1)}")
    A_(f"s_cselect_b32 {s(t+2)}, {WS_KX}, {WS_QX}")
    A_(f"s_add_u32 {s(gOUTB)}, {s(gOUTB)}, {s(t+2)}")
    srd(A_, sWSRD, t, 4*MB)
    A_(f"s_lshl_b32 {s(t)}, {s(sWV)}, 10")
    A_(f"s_add_u32 {s(gOUTB)}, {s(gOUTB)}, {s(t)}")
    bits(A_, gOUT, [(3,1,12), (5,1,8), (4,1,7), (2,1,6), (0,2,4)], tmp=gT0)
    g_load_weights(A_)
    g_loop(A_, 'KQ', 'GKQ', 2)
    A_("s_branch G_DONE")
    A_.label("G_VROLE")
    srd(A_, sWSRD, P['Wv'], 4*MB)
    A_(f"s_add_u32 {s(gOUTB)}, {s(gOUTB)}, {WS_VX}")
    A_(f"s_lshl_b32 {s(t)}, {s(sWV)}, 11")
    A_(f"s_add_u32 {s(gOUTB)}, {s(gOUTB)}, {s(t)}")
    bits(A_, gOUT, [(4,1,10), (5,1,8), (0,4,4)], tmp=gT0)
    g_load_weights(A_)
    g_loop(A_, 'V', 'GV', 2)
    A_("s_branch G_DONE")
    A_.label("G_BROLE")
    A_(f"s_cmp_lt_u32 {s(wi)}, 208")
    A_("s_cbranch_scc0 G_SMROLE")
    A_(f"s_sub_u32 {s(t+4)}, {s(wi)}, 192")
    A_(f"s_and_b32 {s(t+5)}, {s(t+4)}, 3")
    A_(f"s_lshr_b32 {s(t+4)}, {s(t+4)}, 2")
    A_(f"s_lshl_b32 {s(gSEG)}, {s(t+4)}, 4")
    A_(f"s_mov_b32 {s(gSTEP)}, 1")
    A_(f"s_mov_b32 {s(gN)}, 16")
    A_(f"s_mov_b32 {s(gROWS)}, 1024")
    A_(f"s_lshl_b32 {s(gCOLB)}, {s(t+5)}, 8")
    A_(f"s_lshl_b32 {s(t)}, {s(sWV)}, 6")
    A_(f"s_add_u32 {s(gCOLB)}, {s(gCOLB)}, {s(t)}")
    A_(f"s_mov_b32 {s(gOUTS)}, {32*1024}")
    A_(f"s_lshl_b32 {s(gOUTB)}, {s(t+5)}, 13")
    A_(f"s_lshl_b32 {s(t)}, {s(sWV)}, 11")
    A_(f"s_add_u32 {s(gOUTB)}, {s(gOUTB)}, {s(t)}")
    A_(f"s_add_u32 {s(gOUTB)}, {s(gOUTB)}, {WS_QB}")
    srd(A_, sWSRD, P['wq'], 512*1024)
    g_load_weights(A_)
    g_loop(A_, 'QB', 'GQB', 2)
    A_("s_branch G_DONE")
    A_.label("G_SMROLE")
    A_(f"s_cmp_lt_u32 {s(wi)}, 216")
    A_("s_cbranch_scc0 G_DONE")
    A_(f"s_sub_u32 {s(t+4)}, {s(wi)}, 208")
    A_(f"s_lshl_b32 {s(gSEG)}, {s(t+4)}, 3")
    A_(f"s_mov_b32 {s(gSTEP)}, 1")
    A_(f"s_mov_b32 {s(gN)}, 8")
    A_(f"s_mov_b32 {s(gROWS)}, 32")
    A_(f"s_mov_b32 {s(gCOLB)}, 0")
    A_(f"s_cmp_eq_u32 {s(sWV)}, 1")
    A_(f"s_cselect_b32 {s(t)}, {s(P['wv'])}, {s(P['wk'])}")
    A_(f"s_cselect_b32 {s(t+1)}, {s(P['wv']+1)}, {s(P['wk']+1)}")
    srd(A_, sWSRD, t, 16384)
    srd(A_, 48, P['gate'], 1024)
    bits(A_, gOUT, [(5,1,8), (0,4,4)], tmp=gT0)
    g_load_weights(A_, small='GSM')
    g_loop(A_, 'SM', 'GSM', 2)
    A_.label("G_DONE")
```

```python
from asmlib import *
from layout import *
from chain2 import srd
PTR = {'x': 64, 'mem0': 66, 'Wq': 68, 'Wk': 70, 'Wv': 72, 'Wo': 74, 'wq': 76, 'wk': 78, 'wv': 80, 'wo': 82, 'gate': 84, 'out': 86, 'dbg': 88, 'ws': 90}
def load_ptrs(A_):
    A_("s_load_dwordx4 s[64:67], s[0:1], 0")
    A_("s_load_dwordx4 s[68:71], s[0:1], 16")
    A_("s_load_dwordx4 s[72:75], s[0:1], 32")
    A_("s_load_dwordx4 s[76:79], s[0:1], 64")
    A_("s_load_dwordx4 s[80:83], s[0:1], 80")
    A_("s_load_dwordx4 s[84:87], s[0:1], 96")
    A_("s_load_dwordx4 s[88:91], s[0:1], 112")
def kernel_head(A_, name):
    A_(".text"); A_(f".globl {name}"); A_(".p2align 8"); A_(f".type {name},@function")
    A_.label(name)
def kernel_tail(A_, name, vg=512, acc=256):
    A_('.section .rodata,"a"'); A_(".p2align 6"); A_(f".amdhsa_kernel {name}")
    A_(f"""  .amdhsa_next_free_vgpr {vg}
  .amdhsa_next_free_sgpr 102
  .amdhsa_accum_offset {acc}
  .amdhsa_group_segment_fixed_size 0
  .amdhsa_kernarg_size 128
  .amdhsa_user_sgpr_count 2
  .amdhsa_user_sgpr_kernarg_segment_ptr 1
  .amdhsa_system_sgpr_workgroup_id_x 1
.end_amdhsa_kernel""")
    A_(".text")
def wave_and_lane(A_, sWV=21):
    A_("v_lshrrev_b32 v1, 6, v0")
    A_("v_and_b32 v0, 63, v0")
    A_("s_nop 0")
    A_(f"v_readfirstlane_b32 {s(sWV)}, v1")

def role_assign(A_, pfx="RA", sWV=21, sH=20, sXCC=92, sDBG=16):
    A_(f"s_getreg_b32 {s(sXCC)}, hwreg(HW_REG_XCC_ID, 0, 4)")
    A_(f"s_cmp_eq_u32 {s(sWV)}, 0")
    A_(f"s_cbranch_scc0 {pfx}_WAIT")
    A_(f"s_lshl_b32 s93, {s(sXCC)}, 2")
    A_("v_mov_b32 v1, s93")
    A_("v_mov_b32 v2, 1")
    A_("s_mov_b64 exec, 1")
    A_(f"buffer_atomic_add v2, v1, {s(sDBG,4)}, 0 offen sc0")
    A_("s_waitcnt vmcnt(0)")
    A_("v_mov_b32 v1, 0")
    A_("ds_write_b32 v1, v2")
    A_("s_waitcnt lgkmcnt(0)")
    A_("s_mov_b64 exec, -1")
    A_.label(f"{pfx}_WAIT")
    A_("s_barrier")
    A_("v_mov_b32 v1, 0")
    A_("ds_read_b32 v2, v1")
    A_("s_waitcnt lgkmcnt(0)")
    A_(f"v_readfirstlane_b32 {s(sH)}, v2")
    A_("s_nop 3")
    A_("s_barrier")
```

```python
MB = 1 << 20
WS_KX   = 0
WS_VX   = 16*MB
WS_QX   = 32*MB
WS_KM   = 48*MB
WS_VM   = 52*MB
WS_PART = 56*MB
PART_SLOT = 32*8192
WS_RING = 57*MB
WS_TIME = 58*MB
WS_QB   = 60*MB
WS_KB   = 62*MB
WS_VB   = 62*MB + 65536
WS_G    = 62*MB + 131072
WS_FL   = 63*MB
FL_G    = WS_FL
FL_KM   = WS_FL + 32768
FL_OB   = WS_FL + 65536
FL_OA   = WS_FL + 65536 + 8192
WS_O    = 64*MB
O_SEG   = 144*2*1024
WS_SIZE = 256*MB
L_WO   = 0
L_HI   = 131072
L_MEMI = L_HI
L_KX0  = L_HI + 8192
L_KX1  = L_HI + 16384
L_QI   = L_HI + 24576
L_KI   = L_QI + 2048
L_OI   = L_KI + 2048
L_END  = L_OI + 2048
assert L_END <= 163840
D_RANK = 0
D_ARRIVE = 32
D_INIT = 36
D_BTICKET = 40
```

```python
import sys, math, struct
from asmlib import *
from layout import *
import kwrap, gemm, battn, final
import chain2 as C
from chain2 import *
def f2u(x): return struct.unpack("<I", struct.pack("<f", x))[0]
NAME = "gated_mix__memory_aug_recurrent_mem_tr__grouped_kv_mqa__prompt_kernel"
P = kwrap.PTR
sXCC, sWI, sGI = 92, 94, 95

def chain_role(A_, **kw):
    lane_consts(A_)
    A_(f"s_lshl_b32 {s(sT)}, {s(sH)}, 13")
    A_(f"s_lshl_b32 {s(sT+1)}, {s(sWV)}, 11")
    A_(f"s_add_u32 {s(sT)}, {s(sT)}, {s(sT+1)}")
    A_(f"s_add_u32 {s(sPST)}, {s(sT)}, {WS_PART}")
    A_(f"s_add_u32 {s(sT)}, {s(sPST)}, {PART_SLOT}")
    for k in range(4): A_(f"v_mov_b32 {v(M+k)}, -1")
    for th in range(2):
        A_(f"buffer_store_dwordx4 {v(M,4)}, {v(vL16)}, {s(sWS,4)}, {s(sPST)} offen offset:{th*1024}")
        A_(f"buffer_store_dwordx4 {v(M,4)}, {v(vL16)}, {s(sWS,4)}, {s(sT)} offen offset:{th*1024}")
    A_(f"s_cmp_lt_u32 {s(sH)}, 24")
    A_("s_cbranch_scc0 CH_NORING")
    A_(f"s_cmp_eq_u32 {s(sWV)}, 0")
    A_("s_cbranch_scc0 CH_NORING")
    A_(f"s_lshl_b32 {s(sT)}, {s(sH)}, 10")
    A_(f"s_add_u32 {s(sT)}, {s(sT)}, {WS_RING}")
    A_(f"buffer_store_dwordx4 {v(M,4)}, {v(vL16)}, {s(sWS,4)}, {s(sT)} offen")
    A_.label("CH_NORING")
    A_("s_waitcnt vmcnt(0)")
    A_("s_barrier")
    A_(f"s_cmp_eq_u32 {s(sWV)}, 0")
    A_("s_cbranch_scc0 CH_NOARR")
    A_("s_mov_b64 exec, 1")
    A_(f"v_mov_b32 {v(vT0)}, {D_ARRIVE}")
    A_(f"v_mov_b32 {v(vT1)}, 1")
    A_(f"buffer_atomic_add {v(vT1)}, {v(vT0)}, {s(sDBG,4)}, 0 offen")
    A_("s_mov_b64 exec, -1")
    A_.label("CH_NOARR")
    load_weights(A_, P)
    A_("s_mov_b32 s96, 1")
    for lab, word, n in (("CH_WA", D_ARRIVE, 32), ("CH_WI", D_INIT, 256)):
        A_(f"s_mov_b32 {s(sSPIN)}, 0")
        A_(f"v_mov_b32 {v(vT0)}, {word}")
        A_.label(lab)
        A_(f"buffer_load_dword {v(vT1)}, {v(vT0)}, {s(sDBG,4)}, 0 offen sc1")
        A_(f"s_add_u32 {s(sSPIN)}, {s(sSPIN)}, 1")
        A_(f"s_cmp_gt_u32 {s(sSPIN)}, {SPIN_MAX*4}")
        A_("s_cbranch_scc1 K_ABORT")
        A_("s_waitcnt vmcnt(0)")
        A_(f"v_cmp_gt_u32 vcc, {n}, {v(vT1)}")
        A_(f"s_cbranch_vccnz {lab}")
    A_("s_barrier")
    A_(f"s_mov_b32 {s(sT+2)}, 2")
    kv_wait(A_, sT+2, "CH_KV0", "K_ABORT")
    A_(f"s_mov_b32 {s(sSTEP)}, 0")
    A_(f"s_mov_b32 {s(sPRD)}, {WS_PART}")
    A_(f"s_lshl_b32 {s(sT)}, {s(sH)}, 13")
    A_(f"s_lshl_b32 {s(sT+1)}, {s(sWV)}, 11")
    A_(f"s_add_u32 {s(sT)}, {s(sT)}, {s(sT+1)}")
    A_(f"s_add_u32 {s(sKXS)}, {s(sT)}, {WS_KX}")
    A_(f"s_add_u32 {s(sVXS)}, {s(sT)}, {WS_VX}")
    A_(f"s_add_u32 {s(sKXD)}, {s(sT+1)}, {L_KX0}")
    A_(f"s_mov_b32 m0, {s(sKXD)}")
    A_(f"s_add_u32 {s(sT+2)}, {s(sKXS)}, 1024")
    A_(f"buffer_load_dwordx4 {v(vL16)}, {s(sWS,4)}, {s(sKXS)} offen lds")
    A_(f"s_add_u32 {s(sT+3)}, {s(sKXD)}, 1024")
    A_(f"s_mov_b32 m0, {s(sT+3)}")
    A_("s_nop 0")
    A_(f"buffer_load_dwordx4 {v(vL16)}, {s(sWS,4)}, {s(sT+2)} offen lds")
    A_(f"buffer_load_dwordx4 {v(VX,4)}, {v(vL16)}, {s(sWS,4)}, {s(sVXS)} offen")
    A_(f"buffer_load_dwordx4 {v(VX+4,4)}, {v(vL16)}, {s(sWS,4)}, {s(sVXS)} offen offset:1024")
    A_(f"s_add_u32 {s(sKXS)}, {s(sKXS)}, {32*8192}")
    A_(f"s_add_u32 {s(sVXS)}, {s(sVXS)}, {32*8192}")
    A_(f"s_add_u32 {s(sKXD)}, {s(sT+1)}, {L_KX1}")
    A_(f"s_lshl_b32 {s(sT)}, {s(sH)}, 11")
    A_(f"s_lshl_b32 {s(sT+1)}, {s(sWV)}, 9")
    A_(f"s_add_u32 {s(sT)}, {s(sT)}, {s(sT+1)}")
    A_(f"s_add_u32 {s(sKMO)}, {s(sT)}, {WS_KM}")
    A_(f"s_add_u32 {s(sVMO)}, {s(sT)}, {WS_VM}")
    A_(f"s_mov_b32 {s(sRRS)}, {WS_RING}")
    A_(f"s_mov_b32 {s(sRWR)}, {WS_RING + 8192}")
    c = 128**-0.5 * math.log2(math.e)
    A_(f"s_mov_b32 {s(sC)}, {hex(f2u(c))}")
    A_(f"s_mov_b32 {s(sC+1)}, {hex(f2u(c))}")
    A_(f"s_lshl_b32 {s(sFLG)}, {s(sH)}, 7")
    A_(f"s_add_u32 {s(sFLG)}, {s(sFLG)}, {FL_KM}")
    load_mem0(A_, P['mem0'])
    for k in range(4): A_(f"v_mov_b32 {v(KXR+28+k)}, -1")
    A_(f"s_xor_b32 {s(sPRS)}, {s(sPST)}, {PART_SLOT}")
    A_(f"ds_write_b128 {v(vMW)}, {v(M,4)}")
    A_(f"ds_write_b128 {v(vMW)}, {v(M+4,4)} offset:1024")
    zero(A_, ACC, 24)
    A_(f"s_cmp_eq_u32 {s(sWV)}, 0")
    A_(f"s_cselect_b32 {s(sT)}, 0, 0x40000000")
    A_(f"v_cmp_eq_u32 vcc, 0, v0")
    A_(f"v_mov_b32 {v(vT0)}, 0x40000000")
    A_(f"v_mov_b32 {v(vT1)}, {s(sT)}")
    A_(f"v_cndmask_b32 {v(vFLG)}, {v(vT0)}, {v(vT1)}, vcc")
    A_("s_waitcnt vmcnt(0)")
    chain_loop(A_, 63, flags=True, **kw)
    A_(f"s_cmp_eq_u32 {s(sSTEP)}, 63")
    A_("s_cbranch_scc0 K_ABORT")
    chain_tail(A_)

def gen(**kw):
    A_ = Asm()
    hdr = open("gated_mix__memory_aug_recurrent_mem_tr__grouped_kv_mqa__prompt.s.ref").read().split("\n")
    lines = []
    for l in hdr:
        if l.startswith("; @launch"):
            lines.append("; @launch grid=(256,1,1) block=(256,1,1) lds=163840"); break
        lines.append(l)
    A_.lines += lines
    A_.lines += open("design_notes.txt").read().rstrip("\n").split("\n")
    A_('.amdgcn_target "amdgcn-amd-amdhsa--gfx950"')
    kwrap.kernel_head(A_, NAME)
    A_("s_cmp_ge_u32 s2, 256")
    A_("s_cbranch_scc1 K_END")
    kwrap.load_ptrs(A_)
    kwrap.wave_and_lane(A_)
    A_("s_waitcnt lgkmcnt(0)")
    srd(A_, sWS, P['ws'], WS_SIZE)
    srd(A_, sDBG, P['dbg'], 256)
    A_("s_mov_b32 s96, 0"); A_("s_mov_b32 s97, 0")
    kwrap.role_assign(A_, sXCC=sXCC)
    A_(f"s_cmp_ge_u32 {s(sH)}, 32"); A_("s_cbranch_scc1 K_END")
    A_(f"s_cmp_ge_u32 {s(sXCC)}, 8"); A_("s_cbranch_scc1 K_END")
    A_(f"s_lshl_b32 {s(sGI)}, {s(sXCC)}, 5")
    A_(f"s_add_u32 {s(sGI)}, {s(sGI)}, {s(sH)}")
    A_(f"s_sub_u32 {s(sWI)}, {s(sGI)}, 32")
    A_(f"s_cmp_eq_u32 {s(sWV)}, 0")
    A_("s_cbranch_scc0 K_NOINIT")
    A_("v_mov_b32 v2, 0")
    A_("v_lshlrev_b32 v1, 2, v0")
    A_(f"s_lshl_b32 s40, {s(sGI)}, 6")
    A_(f"s_add_u32 s40, s40, {FL_OB}")
    A_("s_mov_b64 exec, 0xffff")
    A_(f"buffer_store_dword v2, v1, {s(sWS,4)}, s40 offen sc1")
    A_("s_mov_b64 exec, 1")
    A_(f"s_lshl_b32 s40, {s(sWI)}, 7")
    A_(f"s_add_u32 s40, s40, {FL_G}")
    A_(f"s_lshl_b32 s41, {s(sH)}, 7")
    A_(f"s_add_u32 s41, s41, {FL_KM}")
    A_(f"s_cmp_eq_u32 {s(sXCC)}, 0")
    A_("s_cselect_b32 s40, s41, s40")
    A_(f"buffer_store_dword v2, v1, {s(sWS,4)}, s40 offen sc1")
    A_("s_waitcnt vmcnt(0)")
    A_(f"v_mov_b32 v1, {D_INIT}")
    A_("v_mov_b32 v2, 1")
    A_(f"buffer_atomic_add v2, v1, {s(sDBG,4)}, 0 offen")
    A_("s_mov_b64 exec, -1")
    A_.label("K_NOINIT")
    A_(f"s_cmp_eq_u32 {s(sXCC)}, 0")
    A_("s_cbranch_scc0 K_WORKER")
    chain_role(A_, **kw)
    A_("s_branch K_END")
    A_.label("K_WORKER")
    gemm.g_role(A_, sWI, P)
    srd(A_, sDBG, P['dbg'], 256)
    A_(f"s_mov_b32 s28, 0")
    A_(f"v_mov_b32 v4, {D_INIT}")
    A_.label("K_WI")
    A_(f"buffer_load_dword v5, v4, {s(sDBG,4)}, 0 offen sc1")
    A_("s_add_u32 s28, s28, 1")
    A_("s_cmp_gt_u32 s28, 4000000")
    A_("s_cbranch_scc1 K_ABORT")
    A_("s_waitcnt vmcnt(0)")
    A_("v_cmp_gt_u32 vcc, 256, v5") if False else None
    A_("v_mov_b32 v6, 256")
    A_("v_cmp_gt_u32 vcc, v6, v5")
    A_("s_cbranch_vccnz K_WI")
    A_("s_barrier")
    battn.b_role(A_, waits=True, abort="K_ABORT")
    A_(f"s_sub_u32 {s(final.fSEG)}, {s(sXCC)}, 1")
    A_(f"s_mov_b32 {s(final.fTEAMS)}, 7")
    final.f_role(A_, P, waits=True, abort="K_ABORT")
    A_("s_branch K_END")
    A_.label("K_ABORT")
    A_("s_waitcnt vmcnt(0) lgkmcnt(0)")
    A_(f"s_lshl_b32 s40, {s(sGI)}, 2")
    A_(f"s_add_u32 s40, s40, {s(sWV)}")
    A_(f"s_lshl_b32 s40, s40, 3")
    A_(f"s_add_u32 s40, s40, {WS_TIME}")
    A_("v_mov_b32 v2, s96")
    A_("v_mov_b32 v3, s97")
    A_("v_mov_b32 v4, 0")
    A_("s_mov_b64 exec, 1")
    A_(f"buffer_store_dwordx2 v[2:3], v4, {s(sWS,4)}, s40 offen")
    A_("s_waitcnt vmcnt(0)")
    A_.label("K_END")
    A_("s_endpgm")
    A_('.section .rodata,"a"'); A_(".p2align 6"); A_(f".amdhsa_kernel {NAME}")
    A_("""  .amdhsa_next_free_vgpr 512
  .amdhsa_next_free_sgpr 102
  .amdhsa_accum_offset 256
  .amdhsa_group_segment_fixed_size 0
  .amdhsa_kernarg_size 128
  .amdhsa_user_sgpr_count 2
  .amdhsa_user_sgpr_kernarg_segment_ptr 1
  .amdhsa_system_sgpr_workgroup_id_x 1
.end_amdhsa_kernel""")
    return A_.text()

if __name__ == "__main__":
    kw = {a.split('=')[0]: int(a.split('=')[1]) for a in sys.argv[2:] if '=' in a}
    out = sys.argv[1] if len(sys.argv) > 1 else "gated_mix__memory_aug_recurrent_mem_tr__grouped_kv_mqa__prompt.s"
    open(out, "w").write(gen(**kw))
    print("wrote", out)
```

```python
from asmlib import *
from layout import *
from chain2 import srd, bits
import struct, math
def f2u(x): return struct.unpack("<I", struct.pack("<f", x))[0]

sWS, sDBG = 8, 16
sWV = 21
bL16, bVR, bOUT, bT0, bT1 = 1, 2, 3, 4, 5
bQ = 8
bKF = 12
bVF = 20
bP = 36
bS = 48
bO = 80
bM, bAL = 96, 97
bG = 98
bT = 40
bMASK = 48
bTASK, bSQ, bHB, bJ = 24, 25, 26, 27
bSPIN = 28
DS = None
L_VB = 65536
L_TK = 131072
SPIN_MAX = 4000000

def wait_flag(A_, off_s, thresh, pfx, abort, tv=bT0, tv2=bT1, spin=bSPIN):
    A_(f"s_mov_b32 {s(spin)}, 0")
    A_(f"v_mov_b32 {v(tv2)}, 0")
    A_.label(f"{pfx}_WF")
    A_(f"buffer_load_dword {v(tv)}, {v(tv2)}, {s(sWS,4)}, {s(off_s)} offen sc1")
    A_(f"s_add_u32 {s(spin)}, {s(spin)}, 1")
    A_(f"s_cmp_gt_u32 {s(spin)}, {SPIN_MAX}")
    A_(f"s_cbranch_scc1 {abort}")
    A_("s_waitcnt vmcnt(0)")
    A_(f"v_cmp_gt_u32 vcc, {thresh}, {v(tv)}")
    A_(f"s_cbranch_vccz {pfx}_WFD")
    A_("s_sleep 8")
    A_(f"s_branch {pfx}_WF")
    A_.label(f"{pfx}_WFD")

def b_role(A_, waits=True, abort="K_ABORT"):
    t = bT
    A_(f"v_lshlrev_b32 {v(bL16)}, 4, v0")
    bits(A_, bVR, [(5,1,8), (0,4,4)], add_c=L_VB, tmp=bT0)
    bits(A_, bOUT, [(4,1,10), (5,1,8), (0,4,4)], tmp=bT0)
    A_(f"s_mov_b32 {s(bMASK)}, 0x0000ffff")
    A_(f"s_mov_b32 {s(bMASK+1)}, 0x0000ffff")
    A_(f"v_and_b32 {v(bT0)}, 27, v0")
    A_(f"v_cmp_eq_u32 vcc, 16, {v(bT0)}")
    A_(f"v_mov_b32 {v(bT1)}, 0x3f803f80")
    A_(f"v_mov_b32 {v(bT0)}, 0")
    A_(f"v_cndmask_b32 {v(bT0)}, {v(bT0)}, {v(bT1)}, vcc")
    for k in range(16): A_(f"v_mov_b32 {v(bVF+k)}, {v(bT0)}")
    if DS:
        A_("s_mov_b32 s29, 0")
        DS(38, 29)
    if waits:
        for k in range(8):
            A_(f"s_mov_b32 {s(t)}, {FL_G + (208+k)*128}")
            wait_flag(A_, t, "8", f"BW{k}", abort)
    A_(f"s_lshl_b32 {s(t)}, {s(sWV)}, 15")
    A_(f"s_lshl_b32 {s(t+2)}, {s(20)}, 10")
    for i in range(32):
        A_(f"s_add_u32 {s(t+3)}, {s(t)}, {s(t+2)}")
        A_(f"s_mov_b32 m0, {s(t+3)}")
        A_(f"s_add_u32 {s(t+1)}, {s(t+3)}, {WS_KB}")
        A_(f"buffer_load_dwordx4 {v(bL16)}, {s(sWS,4)}, {s(t+1)} offen lds")
        A_(f"s_add_u32 {s(t+2)}, {s(t+2)}, 1024")
        A_(f"s_and_b32 {s(t+2)}, {s(t+2)}, 0x7fff")
    A_("s_waitcnt vmcnt(0)")
    if DS: A_("s_mov_b32 s29, 0")
    A_.label("B_NEXT")
    A_("s_barrier")
    if DS:
        DS(40, 29)
        A_("s_add_u32 s29, s29, 1")
    A_(f"s_cmp_eq_u32 {s(sWV)}, 0")
    A_("s_cbranch_scc0 B_TK")
    A_("s_mov_b64 exec, 1")
    A_(f"v_mov_b32 {v(bT0)}, {D_BTICKET}")
    A_(f"v_mov_b32 {v(bT1)}, 1")
    A_(f"buffer_atomic_add {v(bT1)}, {v(bT0)}, {s(sDBG,4)}, 0 offen sc0")
    A_(f"v_mov_b32 {v(bT0)}, {L_TK}")
    A_("s_waitcnt vmcnt(0)")
    A_(f"ds_write_b32 {v(bT0)}, {v(bT1)}")
    A_("s_waitcnt lgkmcnt(0)")
    A_("s_mov_b64 exec, -1")
    A_.label("B_TK")
    A_("s_barrier")
    A_(f"v_mov_b32 {v(bT0)}, {L_TK}")
    A_(f"ds_read_b32 {v(bT1)}, {v(bT0)}")
    A_("s_waitcnt lgkmcnt(0)")
    A_(f"v_readfirstlane_b32 {s(bTASK)}, {v(bT1)}")
    A_("s_nop 3")
    A_(f"s_cmp_ge_u32 {s(bTASK)}, 512")
    A_("s_cbranch_scc1 B_DONE")
    A_(f"s_lshr_b32 {s(bSQ)}, {s(bTASK)}, 3")
    A_(f"s_and_b32 {s(bHB)}, {s(bTASK)}, 7")
    A_(f"s_lshl_b32 {s(bHB)}, {s(bHB)}, 2")
    A_(f"s_add_u32 {s(bHB)}, {s(bHB)}, {s(sWV)}")
    if waits:
        A_(f"s_lshr_b32 {s(t)}, {s(bSQ)}, 4")
        A_(f"s_lshl_b32 {s(t)}, {s(t)}, 2")
        A_(f"s_lshr_b32 {s(t+1)}, {s(bHB)}, 3")
        A_(f"s_add_u32 {s(t)}, {s(t)}, {s(t+1)}")
        A_(f"s_lshl_b32 {s(t)}, {s(t)}, 7")
        A_(f"s_add_u32 {s(t)}, {s(t)}, {FL_G + 192*128}")
        A_(f"s_and_b32 {s(t+1)}, {s(bSQ)}, 15")
        A_(f"s_add_u32 {s(t+1)}, {s(t+1)}, 1")
        wait_flag(A_, t, s(t+1), "BWQ", abort)
    A_(f"s_lshl_b32 {s(t)}, {s(bSQ)}, 5")
    A_(f"s_add_u32 {s(t)}, {s(t)}, {s(bHB)}")
    A_(f"s_lshl_b32 {s(t)}, {s(t)}, 10")
    A_(f"s_add_u32 {s(t)}, {s(t)}, {WS_QB}")
    A_(f"buffer_load_dwordx4 {v(bQ,4)}, {v(bL16)}, {s(sWS,4)}, {s(t)} offen sc1")
    A_(f"s_lshl_b32 {s(t)}, {s(bSQ)}, 7")
    A_(f"s_add_u32 {s(t)}, {s(t)}, {WS_G}")
    A_(f"v_and_b32 {v(bT0)}, 31, v0")
    A_(f"v_lshlrev_b32 {v(bT0)}, 2, {v(bT0)}")
    A_(f"buffer_load_dword {v(bG)}, {v(bT0)}, {s(sWS,4)}, {s(t)} offen sc1")
    KA, VAa = 6, 7
    A_(f"v_mov_b32 {v(KA)}, {v(bL16)}")
    A_(f"v_mov_b32 {v(VAa)}, {v(bVR)}")
    def kread(buf, off): return f"ds_read_b128 {v(bKF+4*buf,4)}, {v(KA)} offset:{off}"
    def vread(buf, ab, off): return f"ds_read_b128 {v(bVF+8*buf+4*ab,4)}, {v(VAa)} offset:{off+512*ab}"
    def smm(sb, kb): return f"v_mfma_f32_32x32x16_bf16 {v(bS+16*sb,16)}, {v(bKF+4*kb,4)}, {v(bQ,4)}, 0"
    A_(kread(0, 0)); A_(kread(1, 1024))
    for k in range(0, 16, 2): A_(f"v_mov_b64 {v(bO+k,2)}, 0")
    A_("s_waitcnt vmcnt(0) lgkmcnt(1)")
    A_(smm(0, 0))
    A_("s_nop 7")
    def pv(par, ab): return f"v_mfma_f32_32x32x16_bf16 {v(bO,16)}, {v(bVF+8*par+4*ab,4)}, {v(bP+4*ab,4)}, {v(bO,16)}"
    def stage(par, off, first=False, last=False):
        S = bS + 16*par
        A_(f"s_mov_b64 exec, {s(bMASK,2)}")
        A_(vread(par, 0, off)); A_(vread(par, 1, off))
        A_("s_mov_b64 exec, -1")
        if not last:
            A_("s_waitcnt lgkmcnt(2)")
            A_(smm(1-par, 1-par))
            A_(kread(par, off + 2048))
        else:
            A_("s_waitcnt lgkmcnt(2)")
        for r in range(16):
            A_(f"v_exp_f32 {v(S+r)}, {v(S+r)}")
            if r == 4 and not first: A_(pv(1-par, 0))
            if r == 10 and not first: A_(pv(1-par, 1))
        for r in range(8): A_(f"v_cvt_pk_bf16_f32 {v(bP+r)}, {v(S+2*r)}, {v(S+2*r+1)}")
    stage(0, 0, first=True)
    A_(f"s_mov_b32 {s(bJ)}, 1")
    A_.label("B_LOOP")
    stage(1, 1024); stage(0, 2048)
    A_(f"v_add_u32 {v(KA)}, 2048, {v(KA)}")
    A_(f"v_add_u32 {v(VAa)}, 2048, {v(VAa)}")
    A_(f"s_add_u32 {s(bJ)}, {s(bJ)}, 2")
    A_(f"s_cmp_lt_u32 {s(bJ)}, 63")
    A_("s_cbranch_scc1 B_LOOP")
    stage(1, 1024, last=True)
    A_("s_waitcnt lgkmcnt(0)")
    A_(pv(1, 0)); A_(pv(1, 1))
    A_("s_nop 7"); A_("s_nop 7")
    A_(f"v_max3_f32 {v(bT0)}, |{v(bO)}|, |{v(bO+1)}|, |{v(bO+2)}|")
    A_(f"v_max3_f32 {v(bT1)}, |{v(bO+3)}|, |{v(bO+4)}|, |{v(bO+5)}|")
    A_(f"v_max3_f32 {v(bT0)}, {v(bT0)}, |{v(bO+6)}|, |{v(bO+7)}|")
    A_(f"v_max_f32 {v(bT0)}, {v(bT0)}, {v(bT1)}")
    A_(f"s_mov_b32 {s(t)}, {hex(f2u(2.0**64))}")
    A_(f"s_mov_b32 {s(t+1)}, {hex(f2u(2.0**-64))}")
    A_(f"s_mov_b32 {s(t+2)}, 0x7f800000")
    A_(f"v_cmp_nle_f32 vcc, {v(bO+8)}, {s(t)}") if False else None
    A_(f"v_cmp_nge_f32 {s(t+4,2)}, {s(t)}, {v(bO+8)}")
    A_(f"v_cmp_nle_f32 vcc, {s(t+1)}, {v(bO+8)}")
    A_("s_nop 3")
    A_(f"s_or_b64 {s(t+4,2)}, {s(t+4,2)}, vcc")
    A_(f"v_cmp_nlt_f32 vcc, {v(bT0)}, {v(bAL)}") if False else None
    A_(f"v_mov_b32 {v(bT1)}, {s(t+2)}")
    A_(f"v_cmp_nlt_f32 vcc, {v(bT0)}, {v(bT1)}")
    A_("s_nop 3")
    A_(f"s_or_b64 vcc, vcc, {s(t+4,2)}")
    A_("s_cbranch_vccz B_OK")
    for k in range(0, 16, 2): A_(f"v_mov_b64 {v(bO+k,2)}, 0")
    A_(f"v_mov_b32 {v(bM)}, 0xff800000")
    A_(f"v_mov_b32 {v(KA)}, {v(bL16)}")
    A_(f"v_mov_b32 {v(VAa)}, {v(bVR)}")
    A_(f"s_mov_b32 {s(bJ)}, 0")
    A_.label("B_FB")
    A_(kread(0, 0))
    A_(f"s_mov_b64 exec, {s(bMASK,2)}")
    A_(vread(0, 0, 0)); A_(vread(0, 1, 0))
    A_("s_mov_b64 exec, -1")
    A_("s_waitcnt lgkmcnt(0)")
    A_(smm(0, 0))
    A_("s_nop 7"); A_("s_nop 7")
    S = bS
    A_(f"v_max3_f32 {v(bT0)}, {v(S)}, {v(S+1)}, {v(bM)}")
    for r in range(2, 16, 2): A_(f"v_max3_f32 {v(bT0)}, {v(bT0)}, {v(S+r)}, {v(S+r+1)}")
    A_(f"v_mov_b32 {v(bT1)}, {v(bT0)}")
    A_("s_nop 1")
    A_(f"v_permlane32_swap_b32 {v(bT0)}, {v(bT1)}")
    A_("s_nop 0")
    A_(f"v_max_f32 {v(bT0)}, {v(bT0)}, {v(bT1)}")
    A_(f"v_sub_f32 {v(bAL)}, {v(bM)}, {v(bT0)}")
    A_(f"v_exp_f32 {v(bAL)}, {v(bAL)}")
    A_(f"v_mov_b32 {v(bM)}, {v(bT0)}")
    for r in range(16): A_(f"v_sub_f32 {v(S+r)}, {v(S+r)}, {v(bT0)}")
    for r in range(16): A_(f"v_exp_f32 {v(S+r)}, {v(S+r)}")
    for r in range(16): A_(f"v_mul_f32 {v(bO+r)}, {v(bO+r)}, {v(bAL)}")
    for r in range(8): A_(f"v_cvt_pk_bf16_f32 {v(bP+r)}, {v(S+2*r)}, {v(S+2*r+1)}")
    A_("s_nop 1")
    A_(f"v_mfma_f32_32x32x16_bf16 {v(bO,16)}, {v(bVF,4)}, {v(bP,4)}, {v(bO,16)}")
    A_(f"v_mfma_f32_32x32x16_bf16 {v(bO,16)}, {v(bVF+4,4)}, {v(bP+4,4)}, {v(bO,16)}")
    A_(f"v_add_u32 {v(KA)}, 1024, {v(KA)}")
    A_(f"v_add_u32 {v(VAa)}, 1024, {v(VAa)}")
    A_("s_nop 7"); A_("s_nop 7")
    A_(f"s_add_u32 {s(bJ)}, {s(bJ)}, 1")
    A_(f"s_cmp_lt_u32 {s(bJ)}, 64")
    A_("s_cbranch_scc1 B_FB")
    A_.label("B_OK")
    A_(f"v_rcp_f32 {v(bT0)}, {v(bO+8)}")
    A_(f"v_sub_f32 {v(bT1)}, 1.0, {v(bG)}")
    A_(f"v_mul_f32 {v(bT0)}, {v(bT0)}, {v(bT1)}")
    for r in range(8): A_(f"v_mul_f32 {v(bO+r)}, {v(bO+r)}, {v(bT0)}")
    for r in range(4): A_(f"v_cvt_pk_bf16_f32 {v(bP+r)}, {v(bO+2*r)}, {v(bO+2*r+1)}")
    A_(f"s_mul_i32 {s(t)}, {s(bSQ)}, {O_SEG}")
    A_(f"s_lshr_b32 {s(t+1)}, {s(bHB)}, 1")
    A_(f"s_add_u32 {s(t+1)}, {s(t+1)}, 128")
    A_(f"s_lshl_b32 {s(t+1)}, {s(t+1)}, 11")
    A_(f"s_add_u32 {s(t)}, {s(t)}, {s(t+1)}")
    A_(f"s_and_b32 {s(t+1)}, {s(bHB)}, 1")
    A_(f"s_lshl_b32 {s(t+1)}, {s(t+1)}, 9")
    A_(f"s_add_u32 {s(t)}, {s(t)}, {s(t+1)}")
    A_(f"s_add_u32 {s(t)}, {s(t)}, {WS_O}")
    A_(f"buffer_store_dwordx4 {v(bP,4)}, {v(bOUT)}, {s(sWS,4)}, {s(t)} offen sc1")
    A_(f"s_lshl_b32 {s(t)}, {s(bSQ)}, 5")
    A_(f"s_add_u32 {s(t)}, {s(t)}, {s(bHB)}")
    A_(f"s_lshl_b32 {s(t)}, {s(t)}, 2")
    A_(f"s_add_u32 {s(t)}, {s(t)}, {FL_OB}")
    A_(f"v_mov_b32 {v(bT0)}, 1")
    A_(f"v_mov_b32 {v(bT1)}, 0")
    A_("s_waitcnt vmcnt(0)")
    A_("s_mov_b64 exec, 1")
    A_(f"buffer_store_dword {v(bT0)}, {v(bT1)}, {s(sWS,4)}, {s(t)} offen sc1")
    A_("s_mov_b64 exec, -1")
    A_("s_branch B_NEXT")
    A_.label("B_DONE")
    A_("s_waitcnt vmcnt(0)")
```

```python
from asmlib import *
from layout import *

vL16, vIDX, vRED, vMST, vPUB, vHI, vMW = 1, 2, 3, 4, 5, 6, 7
vMR = [None, 8, 9, 10]
vWO, vQW, vKW, vQR, vKR, vOW = 11, 12, 13, 14, 15, 16
vFLG = 0
vKXR = 17
vSEL = 18
vT0, vT1 = 22, 23
VX, VXN = 24, 32
M = 40
ACC = 72
KXR = 96
WV = V(128); WQ = A(0); WK = A(128)
QA = [ACC+0, ACC+4]; KA = [ACC+8, ACC+12]; VA = [ACC+16, ACC+20]
def wreg(mat, slot, t):
    jj, cc = slot >> 1, slot & 1
    return mat + (jj*32 + t*16 + cc*8)

sWS, sW, sDBG = 8, 12, 16
sH, sWV, sSTEP = 20, 21, 22
sPRD = 23
sKXS, sVXS, sKMO, sVMO, sRRD, sRWR, sRRS, sPST = 24, 25, 26, 27, 28, 29, 30, 31
sKXD = 36
sKVR = 32
sFLG = 33
sPRS = 37
sC = 38
sT = 40
sSPIN = 48
sTIM = 52

SPIN_MAX = 400000

def srd(A_, base, ptr_lo, nbytes):
    A_(f"s_mov_b32 {s(base)}, {s(ptr_lo)}")
    A_(f"s_and_b32 {s(base+1)}, {s(ptr_lo+1)}, 0xffff")
    A_(f"s_mov_b32 {s(base+2)}, {hex(nbytes)}")
    A_(f"s_mov_b32 {s(base+3)}, 0x20000")

def bits(A_, dst, terms, add_s=None, add_c=0, tmp=vT0):
    first = True
    for (lsb, width, shift) in terms:
        A_(f"v_bfe_u32 {v(tmp)}, v0, {lsb}, {width}")
        if first:
            A_(f"v_lshlrev_b32 {v(dst)}, {shift}, {v(tmp)}"); first = False
        else:
            A_(f"v_lshl_add_u32 {v(dst)}, {v(tmp)}, {shift}, {v(dst)}")
    if add_s is not None: A_(f"v_add_u32 {v(dst)}, {s(add_s)}, {v(dst)}")
    if add_c: A_(f"v_add_u32 {v(dst)}, {add_c}, {v(dst)}")

def lane_consts(A_):
    t = sT
    A_(f"v_lshlrev_b32 {v(vL16)}, 4, v0")
    A_(f"v_bfe_u32 {v(vT0)}, v0, 1, 1")
    A_(f"v_mov_b32 {v(vIDX)}, 0x4444")
    A_(f"v_mov_b32 {v(vT1)}, 0xeeee")
    A_(f"v_cmp_eq_u32 vcc, 1, {v(vT0)}")
    A_("s_nop 1")
    A_(f"v_cndmask_b32 {v(vIDX)}, {v(vIDX)}, {v(vT1)}, vcc")
    bits(A_, vPUB, [(0,4,4), (4,2,2)])
    A_(f"v_add_u32 {v(vHI)}, {L_HI}, {v(vL16)}")
    A_(f"s_lshl_b32 {s(t)}, {s(sWV)}, 11")
    A_(f"s_add_u32 {s(t+1)}, {s(t)}, {L_MEMI}")
    A_(f"v_add_u32 {v(vMW)}, {s(t+1)}, {v(vL16)}")
    for jj in (1, 2, 3):
        A_(f"s_xor_b32 {s(t+1)}, {s(t)}, {jj*2048}")
        A_(f"s_add_u32 {s(t+1)}, {s(t+1)}, {L_MEMI}")
        A_(f"v_add_u32 {v(vMR[jj])}, {s(t+1)}, {v(vL16)}")
    A_(f"s_lshl_b32 {s(t)}, {s(sWV)}, 15")
    A_(f"v_add_u32 {v(vWO)}, {s(t)}, {v(vL16)}")
    A_(f"s_lshl_b32 {s(t)}, {s(sWV)}, 9")
    A_(f"s_add_u32 {s(t+1)}, {s(t)}, {L_QI}")
    A_(f"v_add_u32 {v(vQW)}, {s(t+1)}, {v(vPUB)}")
    A_(f"s_add_u32 {s(t+1)}, {s(t)}, {L_KI}")
    bits(A_, vKW, [(2,2,6), (0,1,5), (4,2,3), (1,1,2)], add_s=t+1)
    bits(A_, vQR, [(5,1,8), (4,1,6), (2,2,4), (0,1,3)], add_c=L_QI)
    bits(A_, vKR, [(5,1,9), (4,1,8), (3,1,7), (2,1,5), (0,2,3)], add_c=L_KI)
    A_(f"s_lshr_b32 {s(t)}, {s(sWV)}, 1")
    A_(f"s_lshl_b32 {s(t)}, {s(t)}, 10")
    A_(f"s_and_b32 {s(t+1)}, {s(sWV)}, 1")
    A_(f"s_lshl_b32 {s(t+1)}, {s(t+1)}, 5")
    A_(f"s_add_u32 {s(t)}, {s(t)}, {s(t+1)}")
    A_(f"s_add_u32 {s(t)}, {s(t)}, {L_OI}")
    bits(A_, vOW, [(1,2,6), (0,1,4), (5,1,8), (4,1,3)], add_s=t)
    A_(f"s_lshr_b32 {s(t)}, {s(sH)}, 2")
    A_(f"s_lshl_b32 {s(t)}, {s(t)}, 10")
    A_(f"s_and_b32 {s(t+1)}, {s(sH)}, 3")
    A_(f"s_lshl_b32 {s(t+2)}, {s(t+1)}, 8")
    A_(f"s_add_u32 {s(t+2)}, {s(t+2)}, {s(t)}")
    bits(A_, vRED, [(4,2,13), (0,4,4)], add_s=t+2)
    A_(f"s_lshl_b32 {s(t+2)}, {s(t+1)}, 6")
    A_(f"s_add_u32 {s(t+2)}, {s(t+2)}, {s(t)}")
    bits(A_, vMST, [(2,2,8), (4,1,5), (5,1,4), (0,2,2)], add_s=t+2)
    bits(A_, M, [(2,1,1), (0,2,0)])
    A_(f"v_bfe_u32 {v(M+1)}, v0, 3, 1")
    A_(f"v_lshlrev_b32 {v(M+1)}, 4, {v(M+1)}")
    A_(f"v_mov_b32 {v(M+2)}, 0x3f80")
    A_(f"v_lshlrev_b32 {v(M+2)}, {v(M+1)}, {v(M+2)}")
    A_(f"v_bfe_u32 {v(M+3)}, v0, 1, 1")
    A_(f"v_cmp_eq_u32 vcc, 1, {v(M+3)}")
    A_("s_nop 1")
    A_(f"v_cndmask_b32 {v(M+2)}, {v(M+2)}, 0, vcc") if False else None
    A_(f"v_mov_b32 {v(M+4)}, 0")
    A_(f"v_cndmask_b32 {v(M+2)}, {v(M+2)}, {v(M+4)}, vcc")
    for k in range(4):
        A_(f"v_cmp_eq_u32 vcc, {k}, {v(M)}")
        A_("s_nop 1")
        A_(f"v_cndmask_b32 {v(vSEL+k)}, {v(M+4)}, {v(M+2)}, vcc")
    A_(f"v_add_u32 {v(vKXR)}, {L_KX0}, {v(vL16)}")

def load_weights(A_, ptr):
    STG = L_HI
    vG1, vG2 = 40, 41
    vSW1 = [42, 43, 44, 45]; vSR1 = [46, 47, 48, 49]
    vSW2, vSR2 = 50, 51
    TMP = KXR
    t = sT
    bits(A_, vG1, [(2,4,13), (0,2,4)])
    bits(A_, vG2, [(3,3,10), (0,3,4)])
    A_(f"s_lshl_b32 {s(t)}, {s(sWV)}, 13")
    A_(f"s_add_u32 {s(t)}, {s(t)}, {STG}")
    bits(A_, vSW1[0], [(1,1,8), (2,1,9), (4,1,10), (5,1,11), (3,1,5), (1,1,6), (2,1,7), (0,1,4)], add_s=t)
    for k in (1, 2, 3):
        A_(f"v_xor_b32 {v(vSW1[k])}, {(k&1)*64 + (k>>1)*128}, {v(vSW1[0])}")
    bits(A_, vSR1[0], [(5,1,10), (4,1,5), (2,1,6), (3,1,7), (0,2,3)], add_s=t)
    for k in (1, 2, 3):
        A_(f"v_xor_b32 {v(vSR1[k])}, {(k&1)*64 + (k>>1)*128}, {v(vSR1[0])}")
    bits(A_, vSW2, [(1,2,8), (4,1,10), (3,1,5), (5,1,6), (0,1,4)], add_s=t)
    bits(A_, vSR2, [(5,1,11), (2,1,5), (4,1,6), (3,1,7), (0,2,3)], add_s=t)

    blocks = [('o', b) for b in range(4)] + [('q', b) for b in range(4)] + [('k', b) for b in range(4)] + [('v', b) for b in range(4)]
    def land(b):
        kind, x = blocks[b]
        return {'o': V(128), 'q': WQ, 'k': WK, 'v': WV}[kind] + 32*x
    SR = {'q': 48, 'k': 52, 'v': 56, 'o': 60}
    srd(A_, SR['q'], ptr['Wq'], 4*MB); srd(A_, SR['k'], ptr['Wk'], 4*MB)
    srd(A_, SR['v'], ptr['Wv'], 4*MB); srd(A_, SR['o'], ptr['Wo'], 4*MB)
    def issue(b):
        kind, x = blocks[b]
        dst = land(b)
        if kind == 'o':
            U, th = x >> 1, x & 1
            A_(f"s_lshl_b32 {s(t)}, {s(sH)}, 17")
            A_(f"s_lshl_b32 {s(t+1)}, {s(sWV)}, 8")
            A_(f"s_add_u32 {s(t)}, {s(t)}, {s(t+1)}")
            A_(f"s_add_u32 {s(t)}, {s(t)}, {U*65536 + th*128}")
            for i in range(8):
                A_(f"buffer_load_dwordx4 {dst(4*i,4)}, {v(vG2)}, {s(SR['o'],4)}, {s(t)} offen")
                if i < 7: A_(f"s_add_u32 {s(t)}, {s(t)}, 8192")
        else:
            A_(f"s_xor_b32 {s(t)}, {s(sWV)}, {x}")
            A_(f"s_lshl_b32 {s(t)}, {s(t)}, 20")
            A_(f"s_lshl_b32 {s(t+1)}, {s(sH)}, 8")
            A_(f"s_add_u32 {s(t)}, {s(t)}, {s(t+1)}")
            A_(f"s_lshl_b32 {s(t+1)}, {s(sWV)}, 6")
            A_(f"s_add_u32 {s(t)}, {s(t)}, {s(t+1)}")
            for i in range(8):
                A_(f"buffer_load_dwordx4 {dst(4*i,4)}, {v(vG1)}, {s(SR[kind],4)}, {s(t)} offen")
                if i < 7: A_(f"s_add_u32 {s(t)}, {s(t)}, 131072")
    LOOK = 7
    for b in range(LOOK): issue(b)
    for b in range(16):
        kind, x = blocks[b]
        issued = min(16, b + LOOK)
        A_(f"s_waitcnt vmcnt({8*(issued - b - 1)})")
        src = land(b)
        if kind == 'o':
            U, th = x >> 1, x & 1
            for i in range(8):
                off = (i & 1)*2048 + ((i >> 1) & 1)*4096 + (i >> 2)*128
                A_(f"ds_write_b128 {v(vSW2)}, {src(4*i,4)} offset:{off}")
            A_("s_waitcnt lgkmcnt(0)")
            for tt in range(4):
                for m in range(4):
                    off = (tt + 4*(m & 1) + 16*(m >> 1))*256
                    A_(f"ds_read_b64_tr_b16 {v(TMP + tt*8 + 2*m, 2)}, {v(vSR2)} offset:{off}")
            A_("s_waitcnt lgkmcnt(0)")
            for tt in range(4):
                tl = th*4 + tt
                for hf in range(2):
                    off = (tl*2 + U)*2048 + hf*1024
                    A_(f"ds_write_b128 {v(vWO)}, {v(TMP + tt*8 + 4*hf, 4)} offset:{off}")
            A_("s_waitcnt lgkmcnt(0)")
        else:
            for i in range(8):
                A_(f"ds_write_b128 {v(vSW1[i&3])}, {src(4*i,4)} offset:{(i >> 2)*4096}")
            A_("s_waitcnt lgkmcnt(0)")
            for tl in range(2):
                for cc in range(2):
                    for m in range(4):
                        off = (tl + 2*(m & 1) + 8*(m >> 1) + 16*cc)*256
                        A_(f"ds_read_b64_tr_b16 {src(tl*16 + cc*8 + 2*m, 2)}, {v(vSR1[tl + 2*(m&1)])} offset:{off}")
            A_("s_waitcnt lgkmcnt(0)")
        if b + LOOK < 16: issue(b + LOOK)

def load_mem0(A_, ptr_lo):
    srd(A_, sW, ptr_lo, 8192)
    bits(A_, vT1, [(2,2,11), (0,1,10), (1,1,6), (4,2,3)])
    A_(f"s_lshl_b32 {s(sT)}, {s(sWV)}, 8")
    X = M + 8
    for j in range(2):
        A_(f"buffer_load_dwordx2 {v(X+4*j,2)}, {v(vT1)}, {s(sW,4)}, {s(sT)} offen offset:{128*j}")
        A_(f"buffer_load_dwordx2 {v(X+4*j+2,2)}, {v(vT1)}, {s(sW,4)}, {s(sT)} offen offset:{128*j+32}")
    A_(f"s_mov_b32 {s(sT+1)}, 0x05040100")
    A_(f"s_mov_b32 {s(sT+2)}, 0x07060302")
    A_("s_waitcnt vmcnt(0)")
    for j in range(2):
        x0, x1, y0, y1 = X+4*j, X+4*j+1, X+4*j+2, X+4*j+3
        A_(f"v_perm_b32 {v(M+4*j+0)}, {v(y0)}, {v(x0)}, {s(sT+1)}")
        A_(f"v_perm_b32 {v(M+4*j+1)}, {v(y0)}, {v(x0)}, {s(sT+2)}")
        A_(f"v_perm_b32 {v(M+4*j+2)}, {v(y1)}, {v(x1)}, {s(sT+1)}")
        A_(f"v_perm_b32 {v(M+4*j+3)}, {v(y1)}, {v(x1)}, {s(sT+2)}")

def zero(A_, base, n):
    for k in range(0, n, 2):
        A_(f"v_mov_b64 {v(base+k,2)}, 0")

def kv_wait(A_, need_s, pfx, abort):
    a_, d_ = KXR, KXR+1
    A_(f"v_mbcnt_lo_u32_b32 {v(a_)}, -1, 0")
    A_(f"v_mbcnt_hi_u32_b32 {v(a_)}, -1, {v(a_)}")
    A_(f"v_and_b32 {v(d_)}, 1, {v(a_)}")
    A_(f"v_bfe_u32 {v(a_)}, {v(a_)}, 1, 1")
    A_(f"v_lshlrev_b32 {v(a_)}, 6, {v(a_)}")
    A_(f"v_add_u32 {v(a_)}, {v(a_)}, {v(d_)}")
    A_(f"s_lshl_b32 s44, {s(sH)}, 1")
    A_(f"v_add_u32 {v(a_)}, s44, {v(a_)}")
    A_(f"v_lshlrev_b32 {v(a_)}, 7, {v(a_)}")
    A_(f"s_mov_b32 s45, {FL_G}")
    A_("s_mov_b32 s96, 3")
    A_(f"s_mov_b32 {s(sSPIN)}, 0")
    A_.label(pfx)
    A_(f"buffer_load_dword {v(d_)}, {v(a_)}, {s(sWS,4)}, s45 offen sc1")
    A_(f"s_add_u32 {s(sSPIN)}, {s(sSPIN)}, 1")
    A_(f"s_cmp_gt_u32 {s(sSPIN)}, {SPIN_MAX*4}")
    A_(f"s_cbranch_scc1 {abort}")
    A_("s_waitcnt vmcnt(0)")
    A_(f"v_readlane_b32 s44, {v(d_)}, 0")
    A_(f"v_readlane_b32 s46, {v(d_)}, 2")
    A_("s_nop 3")
    A_(f"s_min_u32 s44, s44, s46")
    A_(f"s_lshl_b32 {s(sKVR)}, s44, 1")
    A_(f"v_readlane_b32 s44, {v(d_)}, 1")
    A_(f"v_readlane_b32 s46, {v(d_)}, 3")
    A_("s_nop 3")
    A_(f"s_min_u32 s44, s44, s46")
    A_(f"s_lshl_b32 s44, s44, 1")
    A_(f"s_add_u32 s44, s44, 1")
    A_(f"s_min_u32 {s(sKVR)}, {s(sKVR)}, s44")
    A_(f"s_cmp_ge_u32 {s(sKVR)}, {s(need_s)}")
    A_(f"s_cbranch_scc0 {pfx}")

def chain_tail(A_):
    def smf(d, areg, breg):
        A_(f"v_smfmac_f32_16x16x64_bf16 {v(d,4)}, {v(areg,4)}, {breg}, {v(vIDX)}")
    def W(mat, slot, t): return wreg(mat, slot, t)(0, 8)
    A_("s_waitcnt lgkmcnt(0)")
    A_("s_barrier")
    for j in range(2, 8): A_(f"ds_read_b128 {v(M+4*j,4)}, {v(vMR[j>>1])} offset:{(j&1)*1024}")
    A_(f"v_mov_b32 {v(vT1)}, {s(sSTEP)}")
    A_(f"buffer_store_dword {v(vT1)}, {v(vFLG)}, {s(sWS,4)}, {s(sFLG)} offen sc1")
    A_("s_waitcnt lgkmcnt(0)")
    for j in range(8):
        for t in range(2):
            smf(KA[t], M+4*j, W(WK,j,t)); smf(VA[t], M+4*j, W(WV,j,t))
    A_("s_nop 7"); A_("s_nop 3")
    for r in (KA[0], KA[1], VA[0], VA[1]):
        A_(f"v_add_f32 {v(r)}, {v(r)}, {v(r+2)}")
        A_(f"v_add_f32 {v(r+1)}, {v(r+1)}, {v(r+3)}")
        A_(f"v_cvt_pk_bf16_f32 {v(r)}, {v(r)}, {v(r+1)}")
    A_(f"buffer_store_dword {v(KA[0])}, {v(vPUB)}, {s(sWS,4)}, {s(sKMO)} offen sc1")
    A_(f"buffer_store_dword {v(KA[1])}, {v(vPUB)}, {s(sWS,4)}, {s(sKMO)} offen offset:256 sc1")
    A_(f"buffer_store_dword {v(VA[0])}, {v(vPUB)}, {s(sWS,4)}, {s(sVMO)} offen sc1")
    A_(f"buffer_store_dword {v(VA[1])}, {v(vPUB)}, {s(sWS,4)}, {s(sVMO)} offen offset:256 sc1")
    A_("s_waitcnt vmcnt(0)")
    A_("s_barrier")
    A_(f"v_mov_b32 {v(vT1)}, 64")
    A_(f"buffer_store_dword {v(vT1)}, {v(vFLG)}, {s(sWS,4)}, {s(sFLG)} offen sc1")
    A_("s_waitcnt vmcnt(0)")


def chain_loop(A_, nsteps, timing=False, abl=(), RW=0, d1=0, d2=0, cut=-1, cnt=0, trace=0, flags=False, ovp=0, ovm=0, dov=4, probe=-1, dstamp=None, **unused):
    LOOP, POLLM, POLLP, ABORT, DONE, NOTRED = "CH_LOOP", "CH_POLLM", "CH_POLLP", "CH_ABORT", "CH_DONE", "CH_NOTRED"
    S0, S1, Sm = M+8, M+12, M+16
    Qop = [M, M+4, ACC, ACC+4]
    KMop = [ACC+8, ACC+12]
    P1, PM = M, M+4
    ONE = M+20
    VMp = [VA[0], VA[1]]
    O0, O1, L = ACC+4, ACC+8, ACC+12
    OC = ACC+20
    FB = [KXR, KXR+8, KXR+16, KXR+24, ACC, ACC+8, ACC+16]
    OP = VX
    RD = ACC
    def mark(k):
        if probe == k:
            A_("s_memtime s[62:63]")
        if cut == k:
            A_("s_waitcnt lgkmcnt(0)")
            A_(f"s_add_u32 {s(sSTEP)}, {s(sSTEP)}, 1")
            A_("s_branch CH_CUT")
    def emit(txt, fill):
        A_(txt)
        for f in fill:
            if f: A_(f)
    def smf(d, areg, breg, *fill): emit(f"v_smfmac_f32_16x16x64_bf16 {v(d,4)}, {v(areg,4)}, {breg}, {v(vIDX)}", fill)
    def mf(txt, *fill): emit(txt, fill)
    def W(mat, slot, t): return wreg(mat, slot, t)(0, 8)
    def frag(fr, hf):
        b = FB[fr % 7]
        return f"ds_read_b128 {v(b+4*hf,4)}, {v(vWO)} offset:{fr*2048+1024*hf}"
    def mread(j): return f"ds_read_b128 {v(M+4*j,4)}, {v(vMR[j>>1])} offset:{(j&1)*1024}"
    def kxread(k): return f"ds_read_b128 {v(KXR+4*k,4)}, {v(vKXR)} offset:{k*1024}"
    def qtr(u, m): return f"ds_read_b64_tr_b16 {v(Qop[u]+2*m,2)}, {v(vQR)} offset:{512*u+128*m}"
    def kmtr(U, m): return f"ds_read_b64_tr_b16 {v(KMop[U]+2*m,2)}, {v(vKR)} offset:{1024*U+64*m}"
    def add(d, a_, b_): return f"v_add_f32 {v(d)}, {v(a_)}, {v(b_)}"
    def cvt(d, a_, b_): return f"v_cvt_pk_bf16_f32 {v(d)}, {v(a_)}, {v(b_)}"
    def mov64(d, src): return f"v_mov_b64 {v(d,2)}, {src}"
    def sx(T, u, first, *fill):
        d = (S0, S1)[T]
        c = "0" if first else v(d,4)
        emit(f"v_mfma_f32_16x16x32_bf16 {v(d,4)}, {v(KXR+(T*4+u)*4,4)}, {v(Qop[u],4)}, {c}", fill)
    def st1(src, off_s, off): return f"buffer_store_dword {v(src)}, {v(vPUB)}, {s(sWS,4)}, {s(off_s)} offen offset:{off} sc1"

    A_("s_branch CH_A")
    A_.label(LOOP)
    A_(f"s_cmp_eq_u32 {s(sWV)}, {RW}")
    A_(f"s_cbranch_scc0 {NOTRED}")
    for _ in range(d1): A_("s_nop 7")
    if trace: A_("s_memtime s[62:63]")
    A_(f"s_mov_b32 {s(sSPIN)}, 0")
    A_("s_mov_b32 s96, 4")
    PRS = [KXR, M] if ovp else [KXR]
    def pissue(PR):
        A_(f"s_mov_b32 {s(sT)}, {s(sPRD)}")
        for u in range(8):
            A_(f"buffer_load_dwordx4 {v(PR+4*u,4)}, {v(vRED)}, {s(sWS,4)}, {s(sT)} offen sc1")
            if u < 7: A_(f"s_add_u32 {s(sT)}, {s(sT)}, {4*8192}")
    def pcheck(PR, younger):
        for u in range(8):
            A_(f"s_waitcnt vmcnt({7-u+younger})")
            c = "0" if u == 0 else v(RD,4)
            A_(f"v_mfma_f32_16x16x32_bf16 {v(RD,4)}, {v(vSEL,4)}, {v(PR+4*u,4)}, {c}")
            if u == 1: A_(f"v_max_u32 {v(vT0)}, {v(PR)}, {v(PR+4)}")
            if u in (3, 5, 7): A_(f"v_max3_u32 {v(vT0)}, {v(vT0)}, {v(PR+4*(u-1))}, {v(PR+4*u)}")
        A_(f"v_cmp_eq_u32 vcc, -1, {v(vT0)}")
        A_("s_nop 5")
    def spin():
        A_(f"s_add_u32 {s(sSPIN)}, {s(sSPIN)}, 1")
        A_(f"s_cmp_gt_u32 {s(sSPIN)}, {SPIN_MAX}")
        A_(f"s_cbranch_scc1 {ABORT}")
    if not ovp:
        A_.label(POLLP)
        if cnt: A_("s_add_u32 s81, s81, 1")
        pissue(KXR); spin(); pcheck(KXR, 0)
        A_(f"s_cbranch_vccnz {POLLP}")
    else:
        pissue(KXR)
        for _ in range(dov): A_("s_nop 7")
        A_.label(POLLP)
        if cnt: A_("s_add_u32 s81, s81, 1")
        pissue(M); spin(); pcheck(KXR, 8)
        A_("s_cbranch_vccz CH_PDONE")
        if cnt: A_("s_add_u32 s81, s81, 1")
        pissue(KXR); spin(); pcheck(M, 8)
        A_(f"s_cbranch_vccnz {POLLP}")
        A_.label("CH_PDONE")
    if trace:
        A_("s_memtime s[64:65]")
        A_(f"s_mov_b32 s68, {s(sSPIN)}")
    A_(cvt(RD, RD, RD+1))
    A_(f"v_min_u32 {v(RD)}, -2, {v(RD)}")
    A_(f"buffer_store_dword {v(RD)}, {v(vMST)}, {s(sWS,4)}, {s(sRWR)} offen")
    A_("s_barrier")
    A_(f"v_mov_b32 {v(vT1)}, -1")
    A_(f"buffer_store_dword {v(vT1)}, {v(vMST)}, {s(sWS,4)}, {s(sRRS)} offen")
    A_("s_branch CH_HK")
    A_.label(NOTRED)
    A_("s_barrier")
    A_.label("CH_HK")
    A_(f"v_xor_b32 {v(vKXR)}, {L_KX0 ^ L_KX1}, {v(vKXR)}")
    A_(f"s_xor_b32 {s(sKXD)}, {s(sKXD)}, {L_KX0 ^ L_KX1}")
    A_(f"s_add_u32 {s(sSTEP)}, {s(sSTEP)}, 1")
    A_(f"s_xor_b32 {s(sPST)}, {s(sPST)}, {PART_SLOT}")
    A_(f"s_xor_b32 {s(sPRD)}, {s(sPRD)}, {PART_SLOT}")
    A_(f"s_xor_b32 {s(sPRS)}, {s(sPST)}, {PART_SLOT}")
    A_(f"s_cmp_lt_u32 {s(sSTEP)}, 63")
    A_(f"s_cselect_b32 {s(sT)}, {32*8192}, 0")
    A_(f"s_add_u32 {s(sKXS)}, {s(sKXS)}, {s(sT)}")
    A_(f"s_add_u32 {s(sVXS)}, {s(sVXS)}, {s(sT)}")
    A_(f"s_add_u32 {s(sKMO)}, {s(sKMO)}, {32*2048}")
    A_(f"s_add_u32 {s(sVMO)}, {s(sVMO)}, {32*2048}")
    A_(f"s_mov_b32 {s(sRRS)}, {s(sRWR)}")
    A_(f"s_add_u32 {s(sRWR)}, {s(sRWR)}, 8192")
    A_(f"s_cmp_ge_u32 {s(sRWR)}, {WS_RING + 3*8192}")
    A_(f"s_cselect_b32 {s(sT)}, {3*8192}, 0")
    A_(f"s_sub_u32 {s(sRWR)}, {s(sRWR)}, {s(sT)}")
    A_(f"s_lshl_b32 {s(sT)}, {s(sWV)}, 11")
    A_(f"s_add_u32 {s(sRRD)}, {s(sRRS)}, {s(sT)}")
    if dstamp: dstamp()
    zero(A_, ACC, 24)
    if ovp: A_("s_waitcnt vmcnt(2)")
    for k in range(4): A_(f"v_mov_b32 {v(KXR+28+k)}, -1")
    if flags:
        A_(f"s_add_u32 {s(sT)}, {s(sSTEP)}, 2")
        A_(f"s_min_u32 {s(sT)}, {s(sT)}, 64")
        A_(f"s_cmp_le_u32 {s(sT)}, {s(sKVR)}")
        A_("s_cbranch_scc1 CH_KVOK")
        kv_wait(A_, sT, "CH_KVW", ABORT)
        A_.label("CH_KVOK")
    for _ in range(d2): A_("s_nop 7")
    A_(f"s_mov_b32 {s(sSPIN)}, 0")
    A_("s_mov_b32 s96, 5")
    def missue(R):
        A_(f"buffer_load_dwordx4 {v(R,4)}, {v(vL16)}, {s(sWS,4)}, {s(sRRD)} offen sc1")
        A_(f"buffer_load_dwordx4 {v(R+4,4)}, {v(vL16)}, {s(sWS,4)}, {s(sRRD)} offen offset:1024 sc1")
    def mcheck(R, younger):
        A_(f"s_waitcnt vmcnt({younger})")
        A_(f"v_max_u32 {v(vT0)}, {v(R)}, {v(R+4)}")
        A_(f"v_cmp_eq_u32 vcc, -1, {v(vT0)}")
        A_(f"ds_write_b128 {v(vMW)}, {v(R,4)}")
        A_(f"ds_write_b128 {v(vMW)}, {v(R+4,4)} offset:1024")
    if not ovm:
        A_.label(POLLM)
        if cnt: A_("s_add_u32 s82, s82, 1")
        missue(M); spin()
        A_(f"s_cmp_eq_u32 {s(sSTEP)}, {nsteps}")
        mcheck(M, 0)
        A_(f"s_cbranch_vccnz {POLLM}")
    else:
        R2 = KXR
        missue(M)
        for _ in range(dov): A_("s_nop 7")
        A_.label(POLLM)
        if cnt: A_("s_add_u32 s82, s82, 1")
        missue(R2); spin()
        mcheck(M, 2)
        A_("s_cbranch_vccz CH_MOK")
        if cnt: A_("s_add_u32 s82, s82, 1")
        missue(M); spin()
        mcheck(R2, 2)
        A_(f"s_cbranch_vccnz {POLLM}")
        for k in range(0, 8, 2): A_(mov64(M+k, v(R2+k,2)))
        A_.label("CH_MOK")
        A_(f"s_cmp_eq_u32 {s(sSTEP)}, {nsteps}")
    if trace:
        A_("s_memtime s[66:67]")
        A_("s_waitcnt lgkmcnt(0)")
        A_(f"s_lshl_b32 {s(sT)}, {s(sH)}, 2"); A_(f"s_add_u32 {s(sT)}, {s(sT)}, {s(sWV)}")
        A_(f"s_lshl_b32 {s(sT)}, {s(sT)}, 6"); A_(f"s_add_u32 {s(sT)}, {s(sT)}, {s(sSTEP)}")
        A_(f"s_lshl_b32 {s(sT)}, {s(sT)}, 5"); A_(f"s_add_u32 {s(sT)}, {s(sT)}, {WS_TIME + 65536}")
        for k, r in enumerate((60, 62, 64, 66, 68, sSPIN)):
            A_(f"v_mov_b32 {v(KXR+16+k)}, s{r}")
        A_("s_mov_b64 exec, 1")
        A_(f"v_mov_b32 {v(KXR+24)}, 0")
        A_(f"buffer_store_dwordx4 {v(KXR+16,4)}, {v(KXR+24)}, {s(sWS,4)}, {s(sT)} offen")
        A_(f"buffer_store_dwordx2 {v(KXR+20,2)}, {v(KXR+24)}, {s(sWS,4)}, {s(sT)} offen offset:16")
        A_("s_mov_b64 exec, -1")
        A_(f"s_cmp_eq_u32 {s(sSTEP)}, {nsteps}")
    A_(f"s_cbranch_scc1 {DONE}")
    A_.label("CH_A")
    if trace or probe >= 0: A_("s_memtime s[60:61]")
    mark(0)
    smf(QA[0], M,   W(WQ,0,0), f"buffer_store_dwordx4 {v(KXR+28,4)}, {v(vL16)}, {s(sWS,4)}, {s(sPRS)} offen", f"s_mov_b32 m0, {s(sKXD)}")
    smf(QA[1], M,   W(WQ,0,1), f"buffer_store_dwordx4 {v(KXR+28,4)}, {v(vL16)}, {s(sWS,4)}, {s(sPRS)} offen offset:1024", f"s_add_u32 {s(sT)}, {s(sKXD)}, 1024", mov64(VX, v(VXN,2)))
    smf(KA[0], M,   W(WK,0,0), f"buffer_load_dwordx4 {v(vL16)}, {s(sWS,4)}, {s(sKXS)} offen lds", f"s_mov_b32 m0, {s(sT)}", mov64(VX+2, v(VXN+2,2)))
    smf(KA[1], M,   W(WK,0,1), f"s_add_u32 {s(sT+1)}, {s(sKXS)}, 1024", mov64(VX+4, v(VXN+4,2)))
    smf(QA[0], M+4, W(WQ,1,0), f"buffer_load_dwordx4 {v(vL16)}, {s(sWS,4)}, {s(sT+1)} offen lds", mov64(VX+6, v(VXN+6,2)))
    smf(QA[1], M+4, W(WQ,1,1), f"buffer_load_dwordx4 {v(VXN,4)}, {v(vL16)}, {s(sWS,4)}, {s(sVXS)} offen")
    smf(KA[0], M+4, W(WK,1,0), f"buffer_load_dwordx4 {v(VXN+4,4)}, {v(vL16)}, {s(sWS,4)}, {s(sVXS)} offen offset:1024")
    smf(KA[1], M+4, W(WK,1,1))
    smf(VA[0], M,   W(WV,0,0), "s_waitcnt lgkmcnt(0)", "s_barrier")
    smf(VA[1], M,   W(WV,0,1), mread(2), mread(3), f"v_mov_b32 {v(vT1)}, {s(sSTEP)}" if flags else None)
    smf(VA[0], M+4, W(WV,1,0), mread(4), mread(5))
    smf(VA[1], M+4, W(WV,1,1), mread(6), mread(7))
    if flags: A_(f"buffer_store_dword {v(vT1)}, {v(vFLG)}, {s(sWS,4)}, {s(sFLG)} offen sc1")
    mark(1)
    nA = 6 + (1 if flags else 0) + 0
    if ovm: A_(f"s_waitcnt vmcnt({nA})")
    nk = 0
    for j in range(2, 8):
        A_(f"s_waitcnt lgkmcnt({(7 - j) + nk})")
        smf(QA[0], M+4*j, W(WQ,j,0), kxread(nk) if nk < 8 else None); nk += 1 if nk < 8 else 0
        smf(QA[1], M+4*j, W(WQ,j,1), kxread(nk) if (nk < 8 and j >= 4) else None); nk += 1 if (nk < 8 and j >= 4) else 0
    assert nk == 8, nk
    mark(2)
    fills = {2: [add(QA[0], QA[0], QA[0]+2)], 3: [add(QA[0]+1, QA[0]+1, QA[0]+3)],
             4: [add(QA[1], QA[1], QA[1]+2)], 5: [add(QA[1]+1, QA[1]+1, QA[1]+3)],
             6: [cvt(vT0, QA[0], QA[0]+1)], 7: [cvt(vT1, QA[1], QA[1]+1)],
             8: [f"ds_write_b32 {v(vQW)}, {v(vT0)}"], 9: [f"ds_write_b32 {v(vQW)}, {v(vT1)} offset:256"]}
    kq = [(j, t) for j in range(2, 8) for t in range(2)]
    for n, (j, t) in enumerate(kq):
        smf(KA[t], M+4*j, W(WK,j,t), *fills.get(n, []))
    mark(3)
    fills = {1: ["s_waitcnt lgkmcnt(0)", "s_barrier"],
             2: [qtr(0,0), qtr(0,1), add(KA[0], KA[0], KA[0]+2), add(KA[0]+1, KA[0]+1, KA[0]+3)],
             3: [qtr(1,0), qtr(1,1), add(KA[1], KA[1], KA[1]+2), add(KA[1]+1, KA[1]+1, KA[1]+3)],
             4: [qtr(2,0), qtr(2,1), cvt(vT0, KA[0], KA[0]+1), cvt(vT1, KA[1], KA[1]+1)],
             5: [f"ds_write_b32 {v(vKW)}, {v(vT0)}", f"ds_write_b32 {v(vKW)}, {v(vT1)} offset:256"],
             6: [qtr(3,0), qtr(3,1)],
             7: [st1(vT0, sKMO, 0)], 8: [st1(vT1, sKMO, 256)],
             10: ["s_waitcnt lgkmcnt(0)", "s_barrier"],
             11: [kmtr(0,0), kmtr(0,1)]}
    for n, (j, t) in enumerate(kq):
        mark(20+n)
        smf(VA[t], M+4*j, W(WV,j,t), *fills.get(n, []))
    mark(4)
    sx(0, 0, True, kmtr(1,0), kmtr(1,1), mov64(Sm, "0"))
    sx(1, 0, True, mov64(Sm+2, "0"))
    sx(0, 1, False, add(VA[0], VA[0], VA[0]+2), add(VA[0]+1, VA[0]+1, VA[0]+3))
    sx(1, 1, False, add(VA[1], VA[1], VA[1]+2), add(VA[1]+1, VA[1]+1, VA[1]+3))
    sx(0, 2, False, cvt(VA[0], VA[0], VA[0]+1), cvt(VA[1], VA[1], VA[1]+1))
    sx(1, 2, False, st1(VA[0], sVMO, 0), f"v_mov_b32 {v(VA[0]+1)}, 0", f"v_mov_b32 {v(VA[1]+1)}, 0")
    sx(0, 3, False, st1(VA[1], sVMO, 256))
    sx(1, 3, False, "s_waitcnt lgkmcnt(0)")
    mark(5)
    smf(Sm, KMop[0], v(M,8), frag(0,0), frag(0,1))
    smf(Sm, KMop[1], v(ACC,8), frag(1,0), frag(1,1))
    A_(f"v_max3_f32 {v(vT0)}, {v(S0)}, {v(S0+1)}, {v(S0+2)}")
    A_(f"v_max3_f32 {v(vT1)}, {v(S1)}, {v(S1+1)}, {v(S1+2)}")
    A_(frag(2,0)); A_(frag(2,1))
    A_(f"v_max3_f32 {v(vT0)}, {v(vT0)}, {v(S0+3)}, {v(S1+3)}")
    A_(frag(3,0)); A_(frag(3,1))
    A_(f"v_mov_b32 {v(ONE)}, 0x3f803f80")
    A_(f"v_max_f32 {v(vT0)}, {v(vT0)}, {v(vT1)}")
    mark(6)
    A_(add(Sm, Sm, Sm+2))
    A_(add(Sm+1, Sm+1, Sm+3))
    A_(f"v_mov_b32 {v(ONE+1)}, 0x3f803f80")
    A_(f"v_max3_f32 {v(vT0)}, {v(vT0)}, {v(Sm)}, {v(Sm+1)}")
    A_(f"v_mov_b32 {v(PM+1)}, 0")
    A_(f"v_mov_b32 {v(vT1)}, {v(vT0)}")
    A_(f"v_mov_b32 {v(ONE+2)}, 0x3f803f80")
    A_(f"v_mov_b32 {v(ONE+3)}, 0x3f803f80")
    A_(f"v_permlane16_swap_b32 {v(vT0)}, {v(vT1)}")
    A_(mov64(M+24, "0"))
    A_(f"v_max_f32 {v(vT0)}, {v(vT0)}, {v(vT1)}")
    A_(f"v_mov_b32 {v(vT1)}, {v(vT0)}")
    A_(mov64(M+26, "0"))
    A_(mov64(M+28, "0"))
    A_(f"v_permlane32_swap_b32 {v(vT0)}, {v(vT1)}")
    A_(mov64(M+30, "0"))
    A_(f"v_max_f32 {v(vT0)}, {v(vT0)}, {v(vT1)}")
    A_(f"v_mul_f32 {v(vT0)}, {s(sC)}, {v(vT0)}")
    mark(7)
    for r in (S0, S0+2, S1, S1+2, Sm):
        A_(f"v_pk_fma_f32 {v(r,2)}, {v(r,2)}, {s(sC,2)}, {v(vT0,2)} op_sel_hi:[1,1,0] neg_lo:[0,0,1] neg_hi:[0,0,1]")
    for r in (S0, S0+1, S0+2, S0+3, S1, S1+1, S1+2, S1+3, Sm, Sm+1):
        A_(f"v_exp_f32 {v(r)}, {v(r)}")
    A_(cvt(P1, S0, S0+1)); A_(cvt(P1+1, S0+2, S0+3)); A_(cvt(P1+2, S1, S1+1)); A_(cvt(P1+3, S1+2, S1+3))
    A_(cvt(PM, Sm, Sm+1))
    mark(8)
    A_("s_nop 0")
    mf(f"v_mfma_f32_16x16x32_bf16 {v(L,4)}, {v(ONE,4)}, {v(P1,4)}, 0", mov64(M+6, "0"), mov64(M+8, "0"))
    mf(f"v_mfma_f32_16x16x32_bf16 {v(O0,4)}, {v(VX,4)}, {v(P1,4)}, 0", mov64(M+10, "0"), mov64(M+12, "0"))
    mf(f"v_mfma_f32_16x16x32_bf16 {v(O1,4)}, {v(VX+4,4)}, {v(P1,4)}, 0", mov64(M+14, "0"), mov64(M+16, "0"))
    mf(f"v_mfma_f32_16x16x16_bf16 {v(L,4)}, {v(ONE,2)}, {v(PM,2)}, {v(L,4)}", mov64(M+18, "0"))
    mf(f"v_mfma_f32_16x16x16_bf16 {v(O0,4)}, {v(VMp[0],2)}, {v(PM,2)}, {v(O0,4)}", mov64(M, "0"), mov64(M+2, "0"))
    mf(f"v_mfma_f32_16x16x16_bf16 {v(O1,4)}, {v(VMp[1],2)}, {v(PM,2)}, {v(O1,4)}", mov64(M+20, "0"), mov64(M+22, "0"))
    mark(9)
    A_(f"v_rcp_f32 {v(vT0)}, {v(L)}")
    A_(mov64(M+4, "0"))
    A_("s_nop 3")
    for r in (O0, O0+2, O1, O1+2):
        A_(f"v_pk_mul_f32 {v(r,2)}, {v(r,2)}, {v(vT0,2)} op_sel_hi:[1,0]")
    A_(cvt(OC, O0, O0+1)); A_(cvt(OC+1, O0+2, O0+3))
    A_(cvt(OC+2, O1, O1+1))
    A_(f"ds_write_b64 {v(vOW)}, {v(OC,2)}")
    A_(cvt(OC+3, O1+2, O1+3))
    A_(f"ds_write_b64 {v(vOW)}, {v(OC+2,2)} offset:512")
    mark(10)
    A_("s_waitcnt lgkmcnt(0)")
    A_("s_barrier")
    A_(f"ds_read_b128 {v(OP,4)}, {v(vHI)} offset:{L_OI-L_HI}")
    A_(f"ds_read_b128 {v(OP+4,4)}, {v(vHI)} offset:{L_OI-L_HI+1024}")
    for fr in (4, 5, 6): A_(frag(fr,0)); A_(frag(fr,1))
    A_(f"s_waitcnt vmcnt({9 if flags else 8})")
    A_("s_waitcnt lgkmcnt(6)")
    mark(11)
    outstanding = [4, 5, 6]
    def tile_post(t):
        b = M + 4*t; st = M + 16*(t >> 2) + (t & 3)
        ops = [add(b, b, b+2), add(b+1, b+1, b+3), cvt(st, b, b+1)]
        if (t & 3) == 0: ops.append(f"v_min_u32 {v(st)}, -2, {v(st)}")
        return ops
    def pstore(th):
        return f"buffer_store_dwordx4 {v(M+16*th,4)}, {v(vL16)}, {s(sWS,4)}, {s(sPST)} offen offset:{th*1024}"
    pend = []
    for fr in range(16):
        t, U = fr >> 1, fr & 1
        if fr in outstanding:
            k = outstanding.index(fr)
            A_(f"s_waitcnt lgkmcnt({2*(len(outstanding)-k-1)})")
            outstanding = outstanding[k+1:]
        fill = []
        if fr + 7 < 16:
            fill += [frag(fr+7, 0), frag(fr+7, 1)]; outstanding.append(fr + 7)
        if fr == 12: fill.append(pstore(0))
        if fr >= 4 and (fr & 1) == 0:
            pend += tile_post((fr - 4) >> 1)
        vf = pend[:2]; pend = pend[2:]
        mark(40+fr)
        smf(M+4*t, OP+4*U, v(FB[fr%7],8), *(fill + vf))
    assert not pend
    mark(12)
    for o in tile_post(6): A_(o)
    A_("s_nop 3")
    for o in tile_post(7): A_(o)
    A_(pstore(1))
    mark(13)
    if probe >= 0:
        A_("s_waitcnt lgkmcnt(0)")
        A_("s_sub_u32 s62, s62, s60")
        A_("s_add_u32 s80, s80, s62")
    A_(f"s_branch {LOOP}")
    if cut >= 0:
        A_.label("CH_CUT")
        A_(f"s_cmp_lt_u32 {s(sSTEP)}, {nsteps}")
        A_("s_cbranch_scc1 CH_A")
        A_(f"s_branch {DONE}")
    A_.label(ABORT)
    A_(f"s_mov_b32 s97, {s(sSTEP)}")
    A_(f"s_mov_b32 {s(sSTEP)}, 0xdead")
    A_.label(DONE)
```

```python
from asmlib import *
from layout import *
from chain2 import srd, bits
from battn import wait_flag
import struct, math
def f2u(x): return struct.unpack("<I", struct.pack("<f", x))[0]

sWS, sDBG, sOUT = 8, 16, 12
sH, sWV = 20, 21
fSEG, fTEAMS, fNEXT = 24, 25, 26
fSPIN = 28
fT = 40
fL16, fQK, fVX, fOUTO, fKMR, fVM, fTH, fCOL = 1, 2, 3, 4, 5, 6, 7, 8
fT0, fT1 = 10, 11
fG = 12
fFG, fFO, fZ = 13, 14, 9
aQ, aK, aV = 144, 176, 208
fQ = 16
fK = 48
fKM = 80
fV = 112
fVMo = 120
fSX = 128
fSM = 144
fP = 160
fO = 176
fD = 192
fRAW = 200
OFL = 'sc1'
L_KMW = 0
L_RED = 8192
L_STG = 16384

def f_consts(A_):
    A_(f"v_lshlrev_b32 {v(fL16)}, 4, v0")
    bits(A_, fQK, [(3,1,12), (5,1,8), (4,1,7), (2,1,6), (0,2,4)], tmp=fT0)
    bits(A_, fVX, [(4,1,10), (5,1,8), (0,4,4)], tmp=fT0)
    bits(A_, fOUTO, [(4,1,10), (5,1,8), (0,4,4)], tmp=fT0)
    A_(f"s_lshl_b32 {s(fT)}, {s(sWV)}, 11")
    bits(A_, fKMR, [(5,1,6), (2,2,4), (0,1,3)], add_s=fT, tmp=fT0)
    A_(f"s_lshl_b32 {s(fT)}, {s(sWV)}, 9")
    bits(A_, fVM, [(0,5,4), (5,1,3)], add_s=fT, tmp=fT0)
    A_(f"v_and_b32 {v(fTH)}, 31, v0")
    A_(f"v_lshrrev_b32 {v(fT0)}, 5, v0")
    A_(f"v_lshlrev_b32 {v(fT0)}, 2, {v(fT0)}")
    A_(f"v_sub_u32 {v(fTH)}, {v(fTH)}, {v(fT0)}")
    A_(f"s_lshl_b32 {s(fT)}, {s(sH)}, 5")
    bits(A_, fCOL, [(4,2,12), (0,4,1)], add_s=fT, tmp=fT0)

def f_issue_weights(A_, P):
    t = fT
    vG = fRAW
    bits(A_, vG, [(1,5,10), (0,1,4)], tmp=fT0)
    srd(A_, 48, P['Wo'], 4*MB)
    srd(A_, 52, P['wo'], 512*1024)
    A_(f"s_lshl_b32 {s(t+2)}, {s(sWV)}, 20")
    A_(f"s_lshl_b32 {s(t+1)}, {s(sH)}, 5")
    A_(f"s_add_u32 {s(t+2)}, {s(t+2)}, {s(t+1)}")
    A_(f"s_lshl_b32 {s(t+3)}, {s(sH)}, 15")
    for ks in range(32):
        A_(f"s_add_u32 {s(t)}, {s(t+2)}, {s(t+3)}")
        A_(f"buffer_load_dwordx4 {a(4*ks,4)}, {v(vG)}, s[48:51], {s(t)} offen")
        A_(f"s_add_u32 {s(t+3)}, {s(t+3)}, 32768")
        A_(f"s_and_b32 {s(t+3)}, {s(t+3)}, 0xfffff")
    A_(f"s_lshl_b32 {s(t)}, {s(sWV)}, 17")
    A_(f"s_add_u32 {s(t)}, {s(t)}, {s(t+1)}")
    for ks in range(32, 36):
        A_(f"buffer_load_dwordx4 {a(4*ks,4)}, {v(vG)}, s[52:55], {s(t)} offen")
        A_(f"s_add_u32 {s(t)}, {s(t)}, 32768")

def f_transpose_weights(A_):
    t = fT
    vSW, vSR = fRAW+1, fRAW+2
    A_(f"s_lshl_b32 {s(t)}, {s(sWV)}, 13")
    A_(f"s_add_u32 {s(t)}, {s(t)}, {L_STG}")
    A_(f"v_add_u32 {v(vSW)}, {s(t)}, {v(fL16)}")
    bits(A_, vSR, [(5,1,9), (4,1,7), (2,2,5), (0,2,3)], add_s=t, tmp=fT0)
    A_("s_waitcnt vmcnt(0)")
    for b0 in range(0, 36, 8):
        n = min(8, 36 - b0)
        for i in range(n): A_(f"ds_write_b128 {v(vSW)}, {a(4*(b0+i),4)} offset:{i*1024}")
        A_("s_waitcnt lgkmcnt(0)")
        for i in range(n):
            for m in range(2):
                A_(f"ds_read_b64_tr_b16 {a(4*(b0+i)+2*m,2)}, {v(vSR)} offset:{i*1024 + m*256}")
        A_("s_waitcnt lgkmcnt(0)")

def poll(A_, vaddr, off_s, cmp_txt, pfx, abort, sleep=1):
    A_(f"s_mov_b32 {s(fSPIN)}, 0")
    A_.label(f"{pfx}_P")
    A_(f"buffer_load_dword {v(fT0)}, {v(vaddr)}, {s(sWS,4)}, {off_s} offen sc1")
    A_(f"s_add_u32 {s(fSPIN)}, {s(fSPIN)}, 1")
    A_(f"s_cmp_gt_u32 {s(fSPIN)}, 4000000")
    A_(f"s_cbranch_scc1 {abort}")
    A_("s_waitcnt vmcnt(0)")
    A_(cmp_txt)
    A_(f"s_cbranch_vccz {pfx}_PD")
    A_(f"s_sleep {sleep}")
    A_(f"s_branch {pfx}_P")
    A_.label(f"{pfx}_PD")

def f_role(A_, P, waits=True, abort="K_ABORT", stamp=None, preissued=False, dstamp=None):
    ds = dstamp if dstamp else (lambda k: None)
    t = fT
    f_consts(A_)
    srd(A_, sOUT, P['out'], 2*MB)
    if not preissued: f_issue_weights(A_, P)
    f_transpose_weights(A_)
    A_(f"v_min_u32 {v(fT0)}, 2, v0")
    A_(f"v_lshlrev_b32 {v(fFG)}, 13, {v(fT0)}")
    A_(f"s_lshl_b32 {s(t)}, {s(sH)}, 8")
    A_(f"v_add_u32 {v(fFG)}, {s(t)}, {v(fFG)}")
    bits(A_, fFO, [(0,5,2)], tmp=fT0)
    A_(f"v_lshrrev_b32 {v(fT0)}, 5, v0")
    A_(f"v_xor_b32 {v(fT0)}, 1, {v(fT0)}")
    A_(f"v_lshl_add_u32 {v(fFO)}, {v(fT0)}, 13, {v(fFO)}")
    A_(f"v_mov_b32 {v(fZ)}, 0")
    if stamp: stamp(4)
    def prefetch(seg_s, pfx):
        if waits:
            A_(f"s_and_b32 {s(t)}, {s(seg_s)}, 1")
            A_(f"s_lshl_b32 {s(t)}, {s(t)}, 7")
            A_(f"s_add_u32 {s(t)}, {s(t)}, {FL_G}")
            A_(f"s_lshr_b32 {s(t+1)}, {s(seg_s)}, 1")
            A_(f"s_add_u32 {s(t+1)}, {s(t+1)}, 1")
            poll(A_, fFG, s(t), f"v_cmp_gt_u32 vcc, {s(t+1)}, {v(fT0)}", pfx, abort, sleep=4)
        A_(f"s_lshl_b32 {s(t)}, {s(seg_s)}, 5")
        A_(f"s_add_u32 {s(t)}, {s(t)}, {s(sH)}")
        A_(f"s_lshl_b32 {s(t)}, {s(t)}, 13")
        A_(f"s_add_u32 {s(t+1)}, {s(t)}, {WS_QX}")
        A_(f"s_add_u32 {s(t+2)}, {s(t)}, {WS_KX}")
        A_(f"s_add_u32 {s(t+4)}, {s(t)}, {WS_VX}")
        A_(f"s_lshl_b32 {s(t+5)}, {s(sWV)}, 11")
        A_(f"s_add_u32 {s(t+4)}, {s(t+4)}, {s(t+5)}")
        for u in range(4):
            for ab in range(2):
                A_(f"buffer_load_dwordx4 {a(aQ+8*u+4*ab,4)}, {v(fQK)}, {s(sWS,4)}, {s(t+1)} offen offset:{u*1024+ab*512}")
        for u in range(4):
            for ab in range(2):
                A_(f"buffer_load_dwordx4 {a(aK+8*u+4*ab,4)}, {v(fQK)}, {s(sWS,4)}, {s(t+2)} offen offset:{u*1024+ab*512}")
        for ab in range(2):
            A_(f"buffer_load_dwordx4 {a(aV+4*ab,4)}, {v(fVX)}, {s(sWS,4)}, {s(t+4)} offen offset:{ab*512}")
        A_(f"s_lshl_b32 {s(t)}, {s(seg_s)}, 7")
        A_(f"s_add_u32 {s(t)}, {s(t)}, {WS_G}")
        A_(f"v_and_b32 {v(fT0)}, 31, v0")
        A_(f"v_lshlrev_b32 {v(fT0)}, 2, {v(fT0)}")
        A_(f"buffer_load_dword {v(fG)}, {v(fT0)}, {s(sWS,4)}, {s(t)} offen sc1")
    prefetch(fSEG, "FP0")
    A_.label("F_LOOP")
    if waits:
        A_(f"s_lshl_b32 {s(t)}, {s(sH)}, 7")
        A_(f"s_add_u32 {s(t)}, {s(t)}, {FL_KM}")
        A_(f"s_add_u32 {s(t+1)}, {s(fSEG)}, 1")
        poll(A_, fZ, s(t), f"v_cmp_gt_u32 vcc, {s(t+1)}, {v(fT0)}", "FWM", abort, sleep=1)
    ds(0)
    A_(f"s_lshl_b32 {s(t)}, {s(fSEG)}, 5")
    A_(f"s_add_u32 {s(t)}, {s(t)}, {s(sH)}")
    A_(f"s_lshl_b32 {s(t+1)}, {s(t)}, 11")
    A_(f"s_add_u32 {s(t+2)}, {s(t+1)}, {WS_KM}")
    A_(f"s_add_u32 {s(t+3)}, {s(t+1)}, {WS_VM}")
    A_(f"s_lshl_b32 {s(t+4)}, {s(sWV)}, 11")
    A_(f"s_mov_b32 m0, {s(t+4)}")
    A_(f"s_add_u32 {s(t+4)}, {s(t+4)}, 1024")
    A_(f"buffer_load_dwordx4 {v(fL16)}, {s(sWS,4)}, {s(t+2)} offen sc1 lds")
    A_(f"s_mov_b32 m0, {s(t+4)}")
    A_(f"s_add_u32 {s(t+2)}, {s(t+2)}, 1024")
    A_(f"buffer_load_dwordx4 {v(fL16)}, {s(sWS,4)}, {s(t+2)} offen sc1 lds")
    A_(f"buffer_load_dwordx2 {v(fVMo,2)}, {v(fVM)}, {s(sWS,4)}, {s(t+3)} offen sc1")
    A_(f"v_mov_b64 {v(fVMo+2,2)}, 0")
    A_(f"v_mov_b64 {v(fP+10,2)}, 0")
    A_("s_waitcnt vmcnt(3)")
    for k in range(8):
        c = "0" if k == 0 else v(fSX,16)
        A_(f"v_mfma_f32_32x32x16_bf16 {v(fSX,16)}, {a(aK+4*k,4)}, {a(aQ+4*k,4)}, {c}")
    A_("s_waitcnt vmcnt(1)")
    for u in range(4):
        for ab in range(2):
            for m in range(2):
                A_(f"ds_read_b64_tr_b16 {v(fKM+8*u+4*ab+2*m,2)}, {v(fKMR)} offset:{512*u+256*ab+128*m}")
    A_(f"v_mov_b32 {v(fT1)}, 0xff800000")
    A_("s_nop 7")
    for r in range(16):
        c = 8*(r >> 2) + (r & 3)
        A_(f"v_cmp_gt_i32 vcc, {c}, {v(fTH)}")
        A_("s_nop 1")
        A_(f"v_cndmask_b32 {v(fSX+r)}, {v(fSX+r)}, {v(fT1)}, vcc")
    A_("s_waitcnt lgkmcnt(0)")
    for k in range(8):
        c = "0" if k == 0 else v(fSM,16)
        A_(f"v_mfma_f32_32x32x16_bf16 {v(fSM,16)}, {v(fKM+4*k,4)}, {a(aQ+4*k,4)}, {c}")
    A_("s_nop 7"); A_("s_nop 3")
    A_(f"v_max3_f32 {v(fT0)}, {v(fSM)}, {v(fSM+1)}, {v(fSM+2)}")
    A_(f"v_max3_f32 {v(fT0)}, {v(fT0)}, {v(fSM+3)}, {v(fSX)}")
    for r in range(1, 15, 2): A_(f"v_max3_f32 {v(fT0)}, {v(fT0)}, {v(fSX+r)}, {v(fSX+r+1)}")
    A_(f"v_max_f32 {v(fT0)}, {v(fT0)}, {v(fSX+15)}")
    A_(f"v_mov_b32 {v(fT1)}, {v(fT0)}")
    A_("s_nop 1")
    A_(f"v_permlane32_swap_b32 {v(fT0)}, {v(fT1)}")
    A_("s_nop 0")
    A_(f"v_max_f32 {v(fT0)}, {v(fT0)}, {v(fT1)}")
    c = 128**-0.5*math.log2(math.e)
    A_(f"s_mov_b32 {s(t)}, {hex(f2u(c))}")
    A_(f"v_mul_f32 {v(fT0)}, {s(t)}, {v(fT0)}")
    for r in list(range(fSX, fSX+16)) + list(range(fSM, fSM+4)):
        A_(f"v_fma_f32 {v(r)}, {v(r)}, {s(t)}, -{v(fT0)}")
    for r in list(range(fSX, fSX+16)) + list(range(fSM, fSM+4)):
        A_(f"v_exp_f32 {v(r)}, {v(r)}")
    A_("s_nop 0")
    for r in range(8): A_(f"v_cvt_pk_bf16_f32 {v(fP+r)}, {v(fSX+2*r)}, {v(fSX+2*r+1)}")
    A_(f"v_cvt_pk_bf16_f32 {v(fP+8)}, {v(fSM)}, {v(fSM+1)}")
    A_(f"v_cvt_pk_bf16_f32 {v(fP+9)}, {v(fSM+2)}, {v(fSM+3)}")
    A_("s_waitcnt vmcnt(0)")
    A_(f"v_mfma_f32_32x32x16_bf16 {v(fO,16)}, {a(aV,4)}, {v(fP,4)}, 0")
    A_(f"v_mfma_f32_32x32x16_bf16 {v(fO,16)}, {a(aV+4,4)}, {v(fP+4,4)}, {v(fO,16)}")
    A_(f"v_mfma_f32_32x32x16_bf16 {v(fO,16)}, {v(fVMo,4)}, {v(fP+8,4)}, {v(fO,16)}")
    A_(f"v_add_f32 {v(fT0)}, {v(fSM)}, {v(fSM+1)}")
    A_(f"v_add_f32 {v(fT1)}, {v(fSM+2)}, {v(fSM+3)}")
    for r in range(0, 16, 2):
        A_(f"v_add_f32 {v(fT0)}, {v(fT0)}, {v(fSX+r)}")
        A_(f"v_add_f32 {v(fT1)}, {v(fT1)}, {v(fSX+r+1)}")
    A_(f"v_add_f32 {v(fT0)}, {v(fT0)}, {v(fT1)}")
    A_(f"v_mov_b32 {v(fT1)}, {v(fT0)}")
    A_("s_nop 1")
    A_(f"v_permlane32_swap_b32 {v(fT0)}, {v(fT1)}")
    A_("s_nop 0")
    A_(f"v_add_f32 {v(fT0)}, {v(fT0)}, {v(fT1)}")
    A_(f"v_rcp_f32 {v(fT0)}, {v(fT0)}")
    A_("s_nop 0")
    A_(f"v_mul_f32 {v(fT0)}, {v(fT0)}, {v(fG)}")
    A_("s_nop 3")
    for r in range(16): A_(f"v_mul_f32 {v(fO+r)}, {v(fO+r)}, {v(fT0)}")
    for r in range(8): A_(f"v_cvt_pk_bf16_f32 {v(fP+r)}, {v(fO+2*r)}, {v(fO+2*r+1)}")
    A_(f"s_mul_i32 {s(t)}, {s(fSEG)}, {O_SEG}")
    A_(f"s_add_u32 {s(t+6)}, {s(t)}, {WS_O}")
    A_(f"s_lshl_b32 {s(t+1)}, {s(sH)}, 2")
    A_(f"s_add_u32 {s(t+1)}, {s(t+1)}, {s(sWV)}")
    A_(f"s_lshl_b32 {s(t+1)}, {s(t+1)}, 11")
    A_(f"s_add_u32 {s(t)}, {s(t+6)}, {s(t+1)}")
    A_(f"buffer_store_dwordx4 {v(fP,4)}, {v(fOUTO)}, {s(sWS,4)}, {s(t)} offen")
    A_(f"buffer_store_dwordx4 {v(fP+4,4)}, {v(fOUTO)}, {s(sWS,4)}, {s(t)} offen offset:512")
    A_("s_waitcnt vmcnt(0)")
    A_("s_barrier")
    ds(1)
    A_(f"s_lshl_b32 {s(t)}, {s(fSEG)}, 7")
    A_(f"s_add_u32 {s(t+5)}, {s(t)}, {FL_OA}")
    A_(f"s_cmp_eq_u32 {s(sWV)}, 0")
    A_("s_cbranch_scc0 F_NOFL")
    A_(f"s_lshl_b32 {s(t+1)}, {s(sH)}, 2")
    A_(f"v_mov_b32 {v(fT0)}, 1")
    A_(f"v_mov_b32 {v(fT1)}, {s(t+1)}")
    A_("s_mov_b64 exec, 1")
    A_(f"buffer_store_dword {v(fT0)}, {v(fT1)}, {s(sWS,4)}, {s(t+5)} offen")
    A_("s_mov_b64 exec, -1")
    A_.label("F_NOFL")
    A_(f"s_add_u32 {s(fNEXT)}, {s(fSEG)}, {s(fTEAMS)}")
    A_(f"s_cmp_ge_u32 {s(fNEXT)}, 64")
    A_("s_cbranch_scc1 F_NOPF")
    prefetch(fNEXT, "FP1")
    A_.label("F_NOPF")
    A_(f"s_lshl_b32 {s(t)}, {s(fSEG)}, 7")
    A_(f"s_add_u32 {s(t)}, {s(t)}, {FL_OB}")
    if waits:
        poll(A_, fFO, s(t), f"v_cmp_eq_u32 vcc, 0, {v(fT0)}", "FA", abort, sleep=1)
    else:
        A_(f"s_add_u32 {s(t)}, {s(t)}, 8192")
        A_(f"v_and_b32 {v(fT1)}, 127, {v(fFO)}")
        poll(A_, fT1, s(t), f"v_cmp_eq_u32 vcc, 0, {v(fT0)}", "FA", abort, sleep=1)
    ds(2)
    A_(f"s_lshl_b32 {s(t)}, {s(sWV)}, 16")
    A_(f"s_add_u32 {s(t)}, {s(t)}, {s(t+6)}")
    A_(f"s_lshl_b32 {s(t+1)}, {s(sWV)}, 13")
    A_(f"s_add_u32 {s(t+1)}, {s(t+1)}, {s(t+6)}")
    A_(f"s_add_u32 {s(t+1)}, {s(t+1)}, {128*2048}")
    RING = 12
    AF = fQ
    A_(f"s_lshl_b32 {s(t+2)}, {s(sH)}, 11")
    def aload(ks):
        b = AF + 8*(ks % RING)
        if ks < 32:
            A_(f"s_add_u32 {s(t+3)}, {s(t)}, {s(t+2)}")
            so = s(t+3)
        else: so = s(t+1)
        A_(f"buffer_load_dwordx4 {v(b,4)}, {v(fL16)}, {s(sWS,4)}, {so} offen {OFL}")
        A_(f"buffer_load_dwordx4 {v(b+4,4)}, {v(fL16)}, {s(sWS,4)}, {so} offen offset:1024 {OFL}")
        if ks < 32:
            A_(f"s_add_u32 {s(t+2)}, {s(t+2)}, 2048")
            A_(f"s_and_b32 {s(t+2)}, {s(t+2)}, 0xffff")
        else: A_(f"s_add_u32 {so}, {so}, 2048")
    for ks in range(RING): aload(ks)
    for ks in range(36):
        left = min(36, ks + RING) - ks - 1
        A_(f"s_waitcnt vmcnt({2*left})")
        b = AF + 8*(ks % RING)
        for T in range(2):
            c = "0" if ks == 0 else v(fD+4*T,4)
            A_(f"v_mfma_f32_16x16x32_bf16 {v(fD+4*T,4)}, {v(b+4*T,4)}, {a(4*ks,4)}, {c}")
        if ks + RING < 36: aload(ks + RING)
    ds(3)
    A_(f"s_lshl_b32 {s(t)}, {s(sWV)}, 11")
    A_(f"s_add_u32 {s(t)}, {s(t)}, {L_RED}")
    A_(f"v_add_u32 {v(fT0)}, {s(t)}, {v(fL16)}")
    A_("s_nop 7")
    A_(f"ds_write_b128 {v(fT0)}, {v(fD,4)}")
    A_(f"ds_write_b128 {v(fT0)}, {v(fD+4,4)} offset:1024")
    A_("s_waitcnt lgkmcnt(0)")
    A_("s_barrier")
    A_(f"s_cmp_lt_u32 {s(sWV)}, 2")
    A_("s_cbranch_scc0 F_NOST")
    A_(f"s_lshl_b32 {s(t)}, {s(sWV)}, 10")
    A_(f"s_add_u32 {s(t)}, {s(t)}, {L_RED}")
    A_(f"v_add_u32 {v(fT0)}, {s(t)}, {v(fL16)}")
    for k in range(4): A_(f"ds_read_b128 {v(fQ+4*k,4)}, {v(fT0)} offset:{k*2048}")
    A_("s_waitcnt lgkmcnt(0)")
    for r in range(4):
        A_(f"v_add_f32 {v(fQ+r)}, {v(fQ+r)}, {v(fQ+4+r)}")
        A_(f"v_add_f32 {v(fQ+8+r)}, {v(fQ+8+r)}, {v(fQ+12+r)}")
    for r in range(4): A_(f"v_add_f32 {v(fQ+r)}, {v(fQ+r)}, {v(fQ+8+r)}")
    for r in range(4): A_(f"v_cvt_pk_bf16_f32 {v(fQ+r)}, {v(fQ+r)}, {v(fQ+r)}")
    A_(f"s_lshl_b32 {s(t)}, {s(fSEG)}, 15")
    A_(f"s_lshl_b32 {s(t+1)}, {s(sWV)}, 14")
    A_(f"s_add_u32 {s(t)}, {s(t)}, {s(t+1)}")
    for r in range(4):
        A_(f"buffer_store_short {v(fQ+r)}, {v(fCOL)}, {s(sOUT,4)}, {s(t)} offen offset:{r*1024}")
    A_.label("F_NOST")
    A_("s_barrier")
    ds(4)
    if dstamp: A_("s_add_u32 s27, s27, 1")
    A_(f"s_mov_b32 {s(fSEG)}, {s(fNEXT)}")
    A_(f"s_cmp_lt_u32 {s(fSEG)}, 64")
    A_("s_cbranch_scc1 F_LOOP")
    A_.label("F_DONE")
    A_("s_waitcnt vmcnt(0)")
```

```python
from asmlib import *
from layout import *
from chain2 import srd, bits
import struct, math
def f2u(x): return struct.unpack("<I", struct.pack("<f", x))[0]

gL16 = 1; gXR = 2
gXG = 10
gOUT = 18; gFV = 19; gT0 = 20; gT1 = 21
gACC = 24
gXF = 40
gPK = 56
gRAW = 64
sWS, sX = 8, 12
sWSRD = 16
sWV = 21
gS, gN, gSEG, gSTEP = 22, 23, 24, 25
gOUTB, gOUTS = 26, 27
gFLAG = 28
gBUF, gBUFN = 29, 30
gXS = 31
gROWS, gCOLB = 32, 33
gT = 40
DS = None
G_STG = 98304
XBUF = 32768

def g_consts(A_):
    A_(f"v_lshlrev_b32 {v(gL16)}, 4, v0")
    A_(f"s_cmp_eq_u32 {s(sWV)}, 0")
    A_(f"s_cselect_b32 {s(gT)}, 0, 0x40000000")
    A_(f"v_mov_b32 {v(gFV)}, {s(gT)}")
    A_(f"v_and_b32 {v(gT0)}, 31, v0")
    A_(f"v_lshlrev_b32 {v(gXR)}, 10, {v(gT0)}")
    A_(f"v_lshrrev_b32 {v(gT1)}, 5, v0")
    A_(f"v_and_b32 {v(gT0)}, 15, v0")
    A_(f"v_xor_b32 {v(gT0)}, {v(gT0)}, {v(gT1)}")
    for b in range(7, -1, -1):
        A_(f"v_xor_b32 {v(gT1)}, {2*b}, {v(gT0)}")
        A_(f"v_lshl_add_u32 {v(gXR+b)}, {v(gT1)}, 4, {v(gXR)}")
    A_(f"s_and_b32 {s(gT)}, {s(sWV)}, 1")
    A_(f"s_lshl_b32 {s(gT)}, {s(gT)}, 3")
    for i in range(8):
        A_(f"s_add_u32 {s(gT+1)}, {s(gT)}, {i}")
        A_(f"v_xor_b32 {v(gT0)}, {s(gT+1)}, v0")
        A_(f"v_and_b32 {v(gT0)}, 15, {v(gT0)}")
        A_(f"v_and_b32 {v(gT1)}, 48, v0")
        A_(f"v_or_b32 {v(gT0)}, {v(gT0)}, {v(gT1)}")
        A_(f"v_lshlrev_b32 {v(gXG+i)}, 4, {v(gT0)}")

def g_load_weights(A_, small=None, rank_s=None):
    vG, vSW, vSR = gRAW, gRAW+1, gRAW+2
    t = gT
    if small is None:
        A_(f"v_lshrrev_b32 {v(gT0)}, 2, v0")
        A_(f"v_mul_lo_u32 {v(vG)}, {v(gT0)}, {s(gROWS)}")
        A_(f"v_and_b32 {v(gT0)}, 3, v0")
        A_(f"v_lshl_add_u32 {v(vG)}, {v(gT0)}, 4, {v(vG)}")
    else:
        bits(A_, vG, [(2,4,5), (0,1,4)], tmp=gT0)
        A_(f"v_bfe_u32 {v(gT0)}, v0, 1, 1")
        A_(f"v_lshl_add_u32 {v(vG)}, {v(gT0)}, 24, {v(vG)}")
    A_(f"s_lshl_b32 {s(t)}, {s(sWV)}, 13")
    A_(f"s_add_u32 {s(t)}, {s(t)}, {G_STG}")
    bits(A_, vSW, [(4,2,8), (1,1,7), (2,2,5), (0,1,4)], add_s=t, tmp=gT0)
    bits(A_, vSR, [(5,1,9), (4,1,7), (2,2,5), (0,2,3)], add_s=t, tmp=gT0)
    A_(f"s_lshl_b32 {s(t+1)}, {s(gROWS)}, 4")
    A_(f"s_mov_b32 {s(t)}, {s(gCOLB)}")
    for b in range(4):
        for i in range(8):
            A_(f"buffer_load_dwordx4 {a(32*b+4*i,4)}, {v(vG)}, {s(sWSRD,4)}, {s(t)} offen")
            A_(f"s_add_u32 {s(t)}, {s(t)}, {s(t+1)}")
    if rank_s is not None: g_prefetch_x(A_, rank_s)
    if small is not None:
        vGG = gRAW+3
        bits(A_, vGG, [(2,4,1)], tmp=gT0)
        A_(f"v_and_b32 {v(gT0)}, 3, v0")
        A_(f"v_cmp_ne_u32 vcc, 2, {v(gT0)}")
        A_(f"v_mov_b32 {v(gT1)}, 0x1000000")
        A_("s_nop 0")
        A_(f"v_cndmask_b32 {v(vGG)}, {v(vGG)}, {v(gT1)}, vcc")
        A_(f"s_cmp_eq_u32 {s(sWV)}, 0")
        A_(f"s_cbranch_scc0 {small}_NOGATE")
        for b in range(4):
            for i in range(8):
                A_(f"buffer_load_ushort {v(gRAW+8+8*b+i)}, {v(vGG)}, s[48:51], 0 offen offset:{(128*b+16*i)*2}")
        A_("s_waitcnt vmcnt(0)")
        for b in range(4):
            for i in range(8):
                A_(f"v_accvgpr_read_b32 {v(gT0)}, {a(32*b+4*i)}")
                A_(f"v_or_b32 {v(gT0)}, {v(gT0)}, {v(gRAW+8+8*b+i)}")
                A_(f"v_accvgpr_write_b32 {a(32*b+4*i)}, {v(gT0)}")
        A_("s_nop 1")
        A_.label(f"{small}_NOGATE")
        A_("s_waitcnt vmcnt(0)")
    for b in range(4):
        if small is None: A_(f"s_waitcnt vmcnt({8*(3-b) + (16 if rank_s is not None else 0)})")
        for i in range(8):
            A_(f"ds_write_b128 {v(vSW)}, {a(32*b+4*i,4)} offset:{i*1024}")
        A_("s_waitcnt lgkmcnt(0)")
        for kk in range(8):
            for m in range(2):
                A_(f"ds_read_b64_tr_b16 {a(32*b+4*kk+2*m,2)}, {v(vSR)} offset:{kk*1024+m*256}")
        A_("s_waitcnt lgkmcnt(0)")

def g_prefetch_x(A_, rank_s):
    t = gT
    A_(f"s_lshl_b32 {s(t)}, {s(rank_s)}, 10")
    A_(f"s_lshl_b32 {s(t+1)}, {s(sWV)}, 19")
    A_(f"s_lshl_b32 {s(t+1)}, {s(sWV)}, 15")
    A_(f"s_add_u32 {s(t)}, {s(t)}, {s(t+1)}")
    for i in range(16):
        A_(f"buffer_load_dwordx4 {v(gRAW+8+4*(i&3),4)}, {v(gL16)}, {s(sX,4)}, {s(t)} offen")
        A_(f"s_add_u32 {s(t)}, {s(t)}, {4*32768}")

def g_stage(A_, buf_s):
    t = gT
    A_(f"s_lshl_b32 {s(t)}, {s(sWV)}, 13")
    A_(f"s_add_u32 {s(t+1)}, {s(t)}, {s(gXS)}")
    A_(f"s_add_u32 {s(t)}, {s(t)}, {s(buf_s)}")
    for i in range(8):
        A_(f"s_mov_b32 m0, {s(t)}")
        if i < 7: A_(f"s_add_u32 {s(t)}, {s(t)}, 1024")
        else: A_("s_nop 0")
        A_(f"buffer_load_dwordx4 {v(gXG+i)}, {s(sX,4)}, {s(t+1)} offen lds")
        if i < 7: A_(f"s_add_u32 {s(t+1)}, {s(t+1)}, 1024")

def g_loop(A_, kind, pfx, nstores):
    t = gT
    L = lambda x: f"{pfx}_{x}"
    A_(f"s_mov_b32 {s(gBUF)}, 0")
    A_(f"s_lshl_b32 {s(gXS)}, {s(gSEG)}, 15")
    A_(f"s_mov_b32 {s(gBUFN)}, 0")
    g_stage(A_, gBUFN)
    A_(f"s_lshl_b32 {s(t+2)}, {s(gSTEP)}, 15")
    A_(f"s_add_u32 {s(gXS)}, {s(gXS)}, {s(t+2)}")
    A_(f"s_mov_b32 {s(gBUFN)}, {XBUF}")
    g_stage(A_, gBUFN)
    A_(f"v_mov_b32 {v(gT1)}, 0x40000000")
    for k in range(nstores):
        A_(f"buffer_store_dword {v(gT1)}, {v(gT1)}, {s(sWS,4)}, 0 offen")
    A_(f"s_mov_b32 {s(gS)}, 0")
    A_(f"s_waitcnt vmcnt({8 + nstores})")
    A_(f"s_branch {L('ENTER')}")
    A_.label(L("LOOP"))
    A_(f"s_waitcnt vmcnt({1 + 8 + 2*nstores})")
    A_.label(L("ENTER"))
    A_("s_barrier")
    if DS: DS(0, gS)
    A_(f"s_max_u32 {s(t)}, {s(gS)}, 2")
    A_(f"s_sub_u32 {s(t)}, {s(t)}, 2")
    A_(f"v_mov_b32 {v(gT0)}, {s(t)}")
    A_("s_mov_b64 exec, 1")
    A_(f"buffer_store_dword {v(gT0)}, {v(gFV)}, {s(sWS,4)}, {s(gFLAG)} offen sc1")
    A_("s_mov_b64 exec, -1")
    A_(f"s_lshl_b32 {s(t+2)}, {s(gSTEP)}, 15")
    A_(f"s_add_u32 {s(gXS)}, {s(gXS)}, {s(t+2)}")
    A_(f"s_add_u32 {s(gBUFN)}, {s(gBUFN)}, {XBUF}")
    A_(f"s_cmp_ge_u32 {s(gBUFN)}, {3*XBUF}")
    A_(f"s_cselect_b32 {s(t+2)}, {3*XBUF}, 0")
    A_(f"s_sub_u32 {s(gBUFN)}, {s(gBUFN)}, {s(t+2)}")
    A_(f"s_lshl_b32 {s(t+4)}, {s(sWV)}, 13")
    A_(f"s_add_u32 {s(t+5)}, {s(t+4)}, {s(gXS)}")
    A_(f"s_add_u32 {s(t+4)}, {s(t+4)}, {s(gBUFN)}")
    def xread(kk): return f"ds_read_b128 {v(gXF+4*(kk&3),4)}, {v(gXR+(kk&7))} offset:{(kk>>3)*256}"
    for kk in range(4): A_(xread(kk))
    def body(orient):
        for kk in range(32):
            A_(f"s_waitcnt lgkmcnt({min(3, 31-kk)})")
            c = "0" if kk == 0 else v(gACC,16)
            if orient == 'KQ':
                A_(f"v_mfma_f32_32x32x16_bf16 {v(gACC,16)}, {a(4*kk,4)}, {v(gXF+4*(kk&3),4)}, {c}")
            else:
                A_(f"v_mfma_f32_32x32x16_bf16 {v(gACC,16)}, {v(gXF+4*(kk&3),4)}, {a(4*kk,4)}, {c}")
            if kk + 4 < 32: A_(xread(kk+4))
            if (kk & 3) == 1:
                A_(f"s_mov_b32 m0, {s(t+4)}")
                A_(f"s_add_u32 {s(t+4)}, {s(t+4)}, 1024")
            if (kk & 3) == 2:
                A_(f"buffer_load_dwordx4 {v(gXG+(kk>>2))}, {s(sX,4)}, {s(t+5)} offen lds")
                A_(f"s_add_u32 {s(t+5)}, {s(t+5)}, 1024")
    if kind == 'SM':
        A_(f"s_cmp_eq_u32 {s(sWV)}, 1")
        A_(f"s_cbranch_scc1 {L('SMV')}")
        body('KQ')
        A_(f"s_branch {L('SMJ')}")
        A_.label(L("SMV"))
        body('V')
        A_.label(L("SMJ"))
    else:
        body('V' if kind == 'V' else 'KQ')
    A_(f"s_add_u32 {s(gBUF)}, {s(gBUF)}, {XBUF}")
    A_(f"s_cmp_ge_u32 {s(gBUF)}, {3*XBUF}")
    A_(f"s_mov_b32 {s(t)}, {XBUF}")
    A_(f"s_cselect_b32 {s(t)}, {(-2*XBUF) & 0xffffffff}, {s(t)}")
    A_(f"s_cselect_b32 {s(t+1)}, 0, {s(gBUF)}")
    A_(f"s_mov_b32 {s(gBUF)}, {s(t+1)}")
    for b in range(8): A_(f"v_add_u32 {v(gXR+b)}, {s(t)}, {v(gXR+b)}")
    A_("s_nop 3")
    if kind == 'QB':
        cq = 0.25*math.log2(math.e)
        A_(f"s_mov_b32 {s(t)}, {hex(f2u(cq))}")
        for r in range(16): A_(f"v_mul_f32 {v(gACC+r)}, {s(t)}, {v(gACC+r)}")
    if kind == 'SM':
        A_(f"v_mul_f32 {v(gT0)}, {hex(f2u(-math.log2(math.e)))}, {v(gACC+8)}")
        A_(f"v_exp_f32 {v(gT0)}, {v(gT0)}")
        A_("s_nop 0")
        A_(f"v_add_f32 {v(gT0)}, 1.0, {v(gT0)}")
        A_(f"v_rcp_f32 {v(gT0)}, {v(gT0)}")
    for j in range(8): A_(f"v_cvt_pk_bf16_f32 {v(gPK+j)}, {v(gACC+2*j)}, {v(gACC+2*j+1)}")
    A_(f"s_mul_i32 {s(t)}, {s(gSEG)}, {s(gOUTS)}")
    A_(f"s_add_u32 {s(t)}, {s(t)}, {s(gOUTB)}")
    if kind in ('KQ', 'V'):
        A_(f"buffer_store_dwordx4 {v(gPK,4)}, {v(gOUT)}, {s(sWS,4)}, {s(t)} offen sc1")
        A_(f"buffer_store_dwordx4 {v(gPK+4,4)}, {v(gOUT)}, {s(sWS,4)}, {s(t)} offen offset:512 sc1")
    elif kind == 'QB':
        A_(f"buffer_store_dwordx4 {v(gPK,4)}, {v(gL16)}, {s(sWS,4)}, {s(t)} offen sc1")
        A_(f"buffer_store_dwordx4 {v(gPK+4,4)}, {v(gL16)}, {s(sWS,4)}, {s(t)} offen offset:1024 sc1")
    else:
        A_(f"s_lshl_b32 {s(t)}, {s(gSEG)}, 10")
        A_(f"s_cmp_eq_u32 {s(sWV)}, 1")
        A_(f"s_cbranch_scc1 {L('STV')}")
        A_(f"s_cmp_eq_u32 {s(sWV)}, 0")
        A_(f"s_cbranch_scc0 {L('STN')}")
        A_(f"s_add_u32 {s(t+1)}, {s(t)}, {WS_KB}")
        A_(f"buffer_store_dwordx4 {v(gPK,4)}, {v(gL16)}, {s(sWS,4)}, {s(t+1)} offen sc1")
        A_(f"s_lshl_b32 {s(t+1)}, {s(gSEG)}, 7")
        A_(f"s_add_u32 {s(t+1)}, {s(t+1)}, {WS_G}")
        A_(f"v_lshlrev_b32 {v(gT1)}, 2, v0")
        A_("s_mov_b64 exec, 0xffffffff")
        A_(f"buffer_store_dword {v(gT0)}, {v(gT1)}, {s(sWS,4)}, {s(t+1)} offen sc1")
        A_("s_mov_b64 exec, -1")
        A_(f"s_branch {L('STD')}")
        A_.label(L("STV"))
        A_(f"s_add_u32 {s(t+1)}, {s(t)}, {WS_VB}")
        A_(f"s_mov_b32 {s(t+2)}, 0x0000ffff")
        A_(f"s_mov_b32 {s(t+3)}, 0x0000ffff")
        A_(f"s_mov_b64 exec, {s(t+2,2)}")
        A_(f"buffer_store_dwordx4 {v(gPK,4)}, {v(gOUT)}, {s(sWS,4)}, {s(t+1)} offen sc1")
        A_(f"buffer_store_dwordx4 {v(gPK+4,4)}, {v(gOUT)}, {s(sWS,4)}, {s(t+1)} offen offset:512 sc1")
        A_("s_mov_b64 exec, -1")
        A_(f"s_branch {L('STD')}")
        A_.label(L("STN"))
        A_("s_waitcnt vmcnt(0)")
        A_.label(L("STD"))
    A_(f"s_add_u32 {s(gSEG)}, {s(gSEG)}, {s(gSTEP)}")
    A_(f"s_add_u32 {s(gS)}, {s(gS)}, 1")
    A_(f"s_cmp_lt_u32 {s(gS)}, {s(gN)}")
    A_(f"s_cbranch_scc1 {L('LOOP')}")
    A_("s_waitcnt vmcnt(0)")
    A_("s_barrier")
    A_(f"s_cmp_eq_u32 {s(sWV)}, 0")
    A_(f"s_cbranch_scc0 {L('END')}")
    A_(f"v_mov_b32 {v(gT0)}, {s(gN)}")
    A_("s_mov_b64 exec, 1")
    A_(f"buffer_store_dword {v(gT0)}, {v(gFV)}, {s(sWS,4)}, {s(gFLAG)} offen sc1")
    A_("s_mov_b64 exec, -1")
    A_("s_waitcnt vmcnt(0)")
    A_.label(L("END"))

def g_role(A_, wi, P, rank_s=None):
    t = gT
    g_consts(A_)
    srd(A_, sX, P['x'], 2*MB)
    A_(f"s_lshl_b32 {s(gFLAG)}, {s(wi)}, 7")
    A_(f"s_add_u32 {s(gFLAG)}, {s(gFLAG)}, {FL_G}")
    A_(f"s_cmp_lt_u32 {s(wi)}, 192")
    A_("s_cbranch_scc0 G_BROLE")
    A_(f"s_lshr_b32 {s(t+4)}, {s(wi)}, 1")
    A_(f"s_and_b32 {s(gSEG)}, {s(wi)}, 1")
    A_(f"s_mov_b32 {s(gSTEP)}, 2")
    A_(f"s_mov_b32 {s(gN)}, 32")
    A_(f"s_and_b32 {s(t+5)}, {s(t+4)}, 31")
    A_(f"s_lshr_b32 {s(t+4)}, {s(t+4)}, 5")
    A_(f"s_mov_b32 {s(gROWS)}, 8192")
    A_(f"s_lshl_b32 {s(gCOLB)}, {s(t+5)}, 8")
    A_(f"s_lshl_b32 {s(t)}, {s(sWV)}, 6")
    A_(f"s_add_u32 {s(gCOLB)}, {s(gCOLB)}, {s(t)}")
    A_(f"s_mov_b32 {s(gOUTS)}, {32*8192}")
    A_(f"s_lshl_b32 {s(gOUTB)}, {s(t+5)}, 13")
    A_(f"s_cmp_eq_u32 {s(t+4)}, 1")
    A_("s_cbranch_scc1 G_VROLE")
    A_(f"s_cmp_eq_u32 {s(t+4)}, 0")
    A_(f"s_cselect_b32 {s(t)}, {s(P['Wk'])}, {s(P['Wq'])}")
    A_(f"s_cselect_b32 {s(t+1)}, {s(P['Wk']+1)}, {s(P['Wq']+1)}")
    A_(f"s_cselect_b32 {s(t+2)}, {WS_KX}, {WS_QX}")
    A_(f"s_add_u32 {s(gOUTB)}, {s(gOUTB)}, {s(t+2)}")
    srd(A_, sWSRD, t, 4*MB)
    A_(f"s_lshl_b32 {s(t)}, {s(sWV)}, 10")
    A_(f"s_add_u32 {s(gOUTB)}, {s(gOUTB)}, {s(t)}")
    bits(A_, gOUT, [(3,1,12), (5,1,8), (4,1,7), (2,1,6), (0,2,4)], tmp=gT0)
    g_load_weights(A_, rank_s=rank_s)
    g_loop(A_, 'KQ', 'GKQ', 2)
    A_("s_branch G_DONE")
    A_.label("G_VROLE")
    srd(A_, sWSRD, P['Wv'], 4*MB)
    A_(f"s_add_u32 {s(gOUTB)}, {s(gOUTB)}, {WS_VX}")
    A_(f"s_lshl_b32 {s(t)}, {s(sWV)}, 11")
    A_(f"s_add_u32 {s(gOUTB)}, {s(gOUTB)}, {s(t)}")
    bits(A_, gOUT, [(4,1,10), (5,1,8), (0,4,4)], tmp=gT0)
    g_load_weights(A_, rank_s=rank_s)
    g_loop(A_, 'V', 'GV', 2)
    A_("s_branch G_DONE")
    A_.label("G_BROLE")
    A_(f"s_cmp_lt_u32 {s(wi)}, 208")
    A_("s_cbranch_scc0 G_SMROLE")
    A_(f"s_sub_u32 {s(t+4)}, {s(wi)}, 192")
    A_(f"s_and_b32 {s(t+5)}, {s(t+4)}, 3")
    A_(f"s_lshr_b32 {s(t+4)}, {s(t+4)}, 2")
    A_(f"s_lshl_b32 {s(gSEG)}, {s(t+4)}, 4")
    A_(f"s_mov_b32 {s(gSTEP)}, 1")
    A_(f"s_mov_b32 {s(gN)}, 16")
    A_(f"s_mov_b32 {s(gROWS)}, 1024")
    A_(f"s_lshl_b32 {s(gCOLB)}, {s(t+5)}, 8")
    A_(f"s_lshl_b32 {s(t)}, {s(sWV)}, 6")
    A_(f"s_add_u32 {s(gCOLB)}, {s(gCOLB)}, {s(t)}")
    A_(f"s_mov_b32 {s(gOUTS)}, {32*1024}")
    A_(f"s_lshl_b32 {s(gOUTB)}, {s(t+5)}, 13")
    A_(f"s_lshl_b32 {s(t)}, {s(sWV)}, 11")
    A_(f"s_add_u32 {s(gOUTB)}, {s(gOUTB)}, {s(t)}")
    A_(f"s_add_u32 {s(gOUTB)}, {s(gOUTB)}, {WS_QB}")
    srd(A_, sWSRD, P['wq'], 512*1024)
    g_load_weights(A_, rank_s=rank_s)
    g_loop(A_, 'QB', 'GQB', 2)
    A_("s_branch G_DONE")
    A_.label("G_SMROLE")
    A_(f"s_cmp_lt_u32 {s(wi)}, 216")
    A_("s_cbranch_scc0 G_DONE")
    A_(f"s_sub_u32 {s(t+4)}, {s(wi)}, 208")
    A_(f"s_lshl_b32 {s(gSEG)}, {s(t+4)}, 3")
    A_(f"s_mov_b32 {s(gSTEP)}, 1")
    A_(f"s_mov_b32 {s(gN)}, 8")
    A_(f"s_mov_b32 {s(gROWS)}, 32")
    A_(f"s_mov_b32 {s(gCOLB)}, 0")
    A_(f"s_cmp_eq_u32 {s(sWV)}, 1")
    A_(f"s_cselect_b32 {s(t)}, {s(P['wv'])}, {s(P['wk'])}")
    A_(f"s_cselect_b32 {s(t+1)}, {s(P['wv']+1)}, {s(P['wk']+1)}")
    srd(A_, sWSRD, t, 16384)
    srd(A_, 48, P['gate'], 1024)
    bits(A_, gOUT, [(5,1,8), (0,4,4)], tmp=gT0)
    g_load_weights(A_, small='GSM', rank_s=rank_s)
    g_loop(A_, 'SM', 'GSM', 2)
    A_.label("G_DONE")
```

```python
import sys, math, struct
from asmlib import *
from layout import *
import kwrap, gemm, battn, final
import chain3 as C
from chain3 import *
def f2u(x): return struct.unpack("<I", struct.pack("<f", x))[0]
NAME = "gated_mix__memory_aug_recurrent_mem_tr__grouped_kv_mqa__prompt_kernel"
P = kwrap.PTR
sXCC, sWI, sGI = 92, 94, 95

PROF = False
def stamp(A_, k, r=254):
    if not PROF: return
    lab = A_.new("PF")
    A_(f"s_cmp_eq_u32 {s(sWV)}, 0")
    A_(f"s_cbranch_scc0 {lab}")
    A_("s_memrealtime s[98:99]")
    A_(f"s_lshl_b32 s100, {s(sGI)}, 7")
    A_(f"s_add_u32 s100, s100, {WS_TIME + 65536 + 4*k}")
    A_("s_waitcnt lgkmcnt(0)")
    A_(f"v_mov_b32 v{r}, s98")
    A_(f"v_mov_b32 v{r+1}, 0")
    A_("s_mov_b64 exec, 1")
    A_(f"buffer_store_dword v{r}, v{r+1}, {s(sWS,4)}, s100 offen")
    A_("s_mov_b64 exec, -1")
    A_.label(lab)

def stamp_dyn(A_, base, idx_s, mul, r=254):
    if not PROF: return
    lab = A_.new("PD")
    A_(f"s_cmp_eq_u32 {s(sWV)}, 0")
    A_(f"s_cbranch_scc0 {lab}")
    A_("s_memrealtime s[98:99]")
    A_("s_memtime s[56:57]")
    A_(f"s_lshl_b32 s100, {s(sGI)}, 8")
    A_(f"s_mul_i32 s101, {s(idx_s)}, {4*mul}")
    A_("s_add_u32 s100, s100, s101")
    A_(f"s_add_u32 s100, s100, {WS_TIME + 131072 + 4*base}")
    A_("s_waitcnt lgkmcnt(0)")
    A_(f"v_mov_b32 v{r}, s98")
    A_(f"v_mov_b32 v{r+1}, 0")
    A_("s_mov_b64 exec, 1")
    A_(f"buffer_store_dword v{r}, v{r+1}, {s(sWS,4)}, s100 offen")
    A_(f"v_mov_b32 v{r}, s56")
    A_("s_add_u32 s100, s100, 65536")
    A_(f"buffer_store_dword v{r}, v{r+1}, {s(sWS,4)}, s100 offen")
    A_("s_mov_b64 exec, -1")
    A_.label(lab)

def chain_role(A_, **kw):
    lane_consts(A_)
    A_(f"s_lshl_b32 {s(sT)}, {s(sH)}, 13")
    A_(f"s_lshl_b32 {s(sT+1)}, {s(sWV)}, 11")
    A_(f"s_add_u32 {s(sT)}, {s(sT)}, {s(sT+1)}")
    A_(f"s_add_u32 {s(sPST)}, {s(sT)}, {WS_PART}")
    A_(f"s_add_u32 {s(sT)}, {s(sPST)}, {PART_SLOT}")
    for k in range(4): A_(f"v_mov_b32 {v(M+k)}, -1")
    for th in range(2):
        A_(f"buffer_store_dwordx4 {v(M,4)}, {v(vL16)}, {s(sWS,4)}, {s(sPST)} offen offset:{th*1024}")
        A_(f"buffer_store_dwordx4 {v(M,4)}, {v(vL16)}, {s(sWS,4)}, {s(sT)} offen offset:{th*1024}")
    A_(f"s_cmp_lt_u32 {s(sH)}, 24")
    A_("s_cbranch_scc0 CH_NORING")
    A_(f"s_cmp_eq_u32 {s(sWV)}, 0")
    A_("s_cbranch_scc0 CH_NORING")
    A_(f"s_lshl_b32 {s(sT)}, {s(sH)}, 10")
    A_(f"s_add_u32 {s(sT)}, {s(sT)}, {WS_RING}")
    A_(f"buffer_store_dwordx4 {v(M,4)}, {v(vL16)}, {s(sWS,4)}, {s(sT)} offen")
    A_.label("CH_NORING")
    A_("s_waitcnt vmcnt(0)")
    A_("s_barrier")
    A_(f"s_cmp_eq_u32 {s(sWV)}, 0")
    A_("s_cbranch_scc0 CH_NOARR")
    A_("s_mov_b64 exec, 1")
    A_(f"v_mov_b32 {v(vT0)}, {D_ARRIVE}")
    A_(f"v_mov_b32 {v(vT1)}, 1")
    A_(f"buffer_atomic_add {v(vT1)}, {v(vT0)}, {s(sDBG,4)}, 0 offen")
    A_("s_mov_b64 exec, -1")
    A_.label("CH_NOARR")
    stamp(A_, 1, 22)
    load_weights(A_, P)
    stamp(A_, 2, 22)
    A_("s_mov_b32 s96, 1")
    for lab, word, n in (("CH_WA", D_ARRIVE, 32), ("CH_WI", D_INIT, 256)):
        A_(f"s_mov_b32 {s(sSPIN)}, 0")
        A_(f"v_mov_b32 {v(vT0)}, {word}")
        A_.label(lab)
        A_(f"buffer_load_dword {v(vT1)}, {v(vT0)}, {s(sDBG,4)}, 0 offen sc1")
        A_(f"s_add_u32 {s(sSPIN)}, {s(sSPIN)}, 1")
        A_(f"s_cmp_gt_u32 {s(sSPIN)}, {SPIN_MAX*4}")
        A_("s_cbranch_scc1 K_ABORT")
        A_("s_waitcnt vmcnt(0)")
        A_(f"v_cmp_gt_u32 vcc, {n}, {v(vT1)}")
        A_(f"s_cbranch_vccnz {lab}")
    A_("s_barrier")
    A_(f"s_mov_b32 {s(sT+2)}, 2")
    kv_wait(A_, sT+2, "CH_KV0", "K_ABORT")
    A_(f"s_mov_b32 {s(sSTEP)}, 0")
    A_(f"s_mov_b32 {s(sPRD)}, {WS_PART}")
    A_(f"s_lshl_b32 {s(sT)}, {s(sH)}, 13")
    A_(f"s_lshl_b32 {s(sT+1)}, {s(sWV)}, 11")
    A_(f"s_add_u32 {s(sT)}, {s(sT)}, {s(sT+1)}")
    A_(f"s_add_u32 {s(sKXS)}, {s(sT)}, {WS_KX}")
    A_(f"s_add_u32 {s(sVXS)}, {s(sT)}, {WS_VX}")
    A_(f"s_add_u32 {s(sKXD)}, {s(sT+1)}, {L_KX0}")
    A_(f"s_mov_b32 m0, {s(sKXD)}")
    A_(f"s_add_u32 {s(sT+2)}, {s(sKXS)}, 1024")
    A_(f"buffer_load_dwordx4 {v(vL16)}, {s(sWS,4)}, {s(sKXS)} offen lds")
    A_(f"s_add_u32 {s(sT+3)}, {s(sKXD)}, 1024")
    A_(f"s_mov_b32 m0, {s(sT+3)}")
    A_("s_nop 0")
    A_(f"buffer_load_dwordx4 {v(vL16)}, {s(sWS,4)}, {s(sT+2)} offen lds")
    A_(f"buffer_load_dwordx4 {v(VXN,4)}, {v(vL16)}, {s(sWS,4)}, {s(sVXS)} offen")
    A_(f"buffer_load_dwordx4 {v(VXN+4,4)}, {v(vL16)}, {s(sWS,4)}, {s(sVXS)} offen offset:1024")
    A_(f"s_add_u32 {s(sKXS)}, {s(sKXS)}, {32*8192}")
    A_(f"s_add_u32 {s(sVXS)}, {s(sVXS)}, {32*8192}")
    A_(f"s_add_u32 {s(sKXD)}, {s(sT+1)}, {L_KX1}")
    A_(f"s_lshl_b32 {s(sT)}, {s(sH)}, 11")
    A_(f"s_lshl_b32 {s(sT+1)}, {s(sWV)}, 9")
    A_(f"s_add_u32 {s(sT)}, {s(sT)}, {s(sT+1)}")
    A_(f"s_add_u32 {s(sKMO)}, {s(sT)}, {WS_KM}")
    A_(f"s_add_u32 {s(sVMO)}, {s(sT)}, {WS_VM}")
    A_(f"s_mov_b32 {s(sRRS)}, {WS_RING}")
    A_(f"s_mov_b32 {s(sRWR)}, {WS_RING + 8192}")
    c = 128**-0.5 * math.log2(math.e)
    A_(f"s_mov_b32 {s(sC)}, {hex(f2u(c))}")
    A_(f"s_mov_b32 {s(sC+1)}, {hex(f2u(c))}")
    A_(f"s_lshl_b32 {s(sFLG)}, {s(sH)}, 7")
    A_(f"s_add_u32 {s(sFLG)}, {s(sFLG)}, {FL_KM}")
    load_mem0(A_, P['mem0'])
    for k in range(4): A_(f"v_mov_b32 {v(KXR+28+k)}, -1")
    A_(f"s_xor_b32 {s(sPRS)}, {s(sPST)}, {PART_SLOT}")
    A_(f"ds_write_b128 {v(vMW)}, {v(M,4)}")
    A_(f"ds_write_b128 {v(vMW)}, {v(M+4,4)} offset:1024")
    zero(A_, ACC, 24)
    A_(f"s_cmp_eq_u32 {s(sWV)}, 0")
    A_(f"s_cselect_b32 {s(sT)}, 0, 0x40000000")
    A_(f"v_cmp_eq_u32 vcc, 0, v0")
    A_(f"v_mov_b32 {v(vT0)}, 0x40000000")
    A_(f"v_mov_b32 {v(vT1)}, {s(sT)}")
    A_(f"v_cndmask_b32 {v(vFLG)}, {v(vT0)}, {v(vT1)}, vcc")
    A_("s_waitcnt vmcnt(0)")
    stamp(A_, 3, 22)
    chain_loop(A_, 63, flags=True, dstamp=((lambda: stamp_dyn(A_, 0, sSTEP, 1, r=KXR+16)) if PROF else None), **kw)
    stamp(A_, 4, 22)
    A_(f"s_cmp_eq_u32 {s(sSTEP)}, 63")
    A_("s_cbranch_scc0 K_ABORT")
    chain_tail(A_)
    stamp(A_, 5, 22)

def gen(**kw):
    exper = kw.pop('exper', 0)
    A_ = Asm()
    hdr = open("gated_mix__memory_aug_recurrent_mem_tr__grouped_kv_mqa__prompt.s.ref").read().split("\n")
    lines = []
    for l in hdr:
        if l.startswith("; @launch"):
            lines.append("; @launch grid=(256,1,1) block=(256,1,1) lds=163840"); break
        lines.append(l)
    A_.lines += lines
    A_.lines += open("design_notes.txt").read().rstrip("\n").split("\n")
    A_('.amdgcn_target "amdgcn-amd-amdhsa--gfx950"')
    kwrap.kernel_head(A_, NAME)
    A_("s_cmp_ge_u32 s2, 256")
    A_("s_cbranch_scc1 K_END")
    kwrap.load_ptrs(A_)
    kwrap.wave_and_lane(A_)
    A_("s_waitcnt lgkmcnt(0)")
    srd(A_, sWS, P['ws'], WS_SIZE)
    srd(A_, sDBG, P['dbg'], 256)
    A_("s_mov_b32 s96, 0"); A_("s_mov_b32 s97, 0")
    kwrap.role_assign(A_, sXCC=sXCC)
    A_(f"s_cmp_ge_u32 {s(sH)}, 32"); A_("s_cbranch_scc1 K_END")
    A_(f"s_cmp_ge_u32 {s(sXCC)}, 8"); A_("s_cbranch_scc1 K_END")
    A_(f"s_lshl_b32 {s(sGI)}, {s(sXCC)}, 5")
    A_(f"s_add_u32 {s(sGI)}, {s(sGI)}, {s(sH)}")
    stamp(A_, 0)
    A_(f"s_lshl_b32 {s(sGI)}, {s(sXCC)}, 5")
    A_(f"s_add_u32 {s(sGI)}, {s(sGI)}, {s(sH)}")
    A_(f"s_sub_u32 {s(sWI)}, {s(sGI)}, 32")
    A_(f"s_cmp_eq_u32 {s(sWV)}, 0")
    A_("s_cbranch_scc0 K_NOINIT")
    A_("v_mov_b32 v2, 0")
    A_("v_lshlrev_b32 v1, 2, v0")
    A_(f"s_lshl_b32 s40, {s(sGI)}, 6")
    A_(f"s_add_u32 s40, s40, {FL_OB}")
    A_("s_mov_b64 exec, 0xffff")
    A_(f"buffer_store_dword v2, v1, {s(sWS,4)}, s40 offen sc1")
    A_("s_mov_b64 exec, 1")
    A_(f"s_lshl_b32 s40, {s(sWI)}, 7")
    A_(f"s_add_u32 s40, s40, {FL_G}")
    A_(f"s_lshl_b32 s41, {s(sH)}, 7")
    A_(f"s_add_u32 s41, s41, {FL_KM}")
    A_(f"s_cmp_eq_u32 {s(sXCC)}, 0")
    A_("s_cselect_b32 s40, s41, s40")
    A_(f"buffer_store_dword v2, v1, {s(sWS,4)}, s40 offen sc1")
    A_("s_waitcnt vmcnt(0)")
    A_(f"v_mov_b32 v1, {D_INIT}")
    A_("v_mov_b32 v2, 1")
    A_(f"buffer_atomic_add v2, v1, {s(sDBG,4)}, 0 offen")
    A_("s_mov_b64 exec, -1")
    A_.label("K_NOINIT")
    A_(f"s_cmp_eq_u32 {s(sXCC)}, 0")
    A_("s_cbranch_scc0 K_WORKER")
    chain_role(A_, **kw)
    A_("s_branch K_END")
    A_.label("K_WORKER")
    stamp(A_, 1)
    if exper == 1:
        A_(f"s_lshl_b32 s40, {s(sWI)}, 7"); A_(f"s_add_u32 s40, s40, {FL_G}")
        A_("v_mov_b32 v2, 32"); A_("v_mov_b32 v1, 0"); A_("s_mov_b64 exec, 1")
        A_(f"buffer_store_dword v2, v1, {s(sWS,4)}, s40 offen sc1"); A_("s_waitcnt vmcnt(0)")
        A_("s_branch K_END")
    gemm.DS = (lambda k, idx: stamp_dyn(A_, k, idx, 1)) if PROF else None
    gemm.g_role(A_, sWI, P, rank_s=20)
    stamp(A_, 2)
    if exper == 2: A_("s_branch K_END")
    final.f_issue_weights(A_, P)
    srd(A_, sDBG, P['dbg'], 256)
    A_(f"s_mov_b32 s28, 0")
    A_(f"v_mov_b32 v4, {D_INIT}")
    A_.label("K_WI")
    A_(f"buffer_load_dword v5, v4, {s(sDBG,4)}, 0 offen sc1")
    A_("s_add_u32 s28, s28, 1")
    A_("s_cmp_gt_u32 s28, 4000000")
    A_("s_cbranch_scc1 K_ABORT")
    A_("s_waitcnt vmcnt(0)")
    A_("v_cmp_gt_u32 vcc, 256, v5") if False else None
    A_("v_mov_b32 v6, 256")
    A_("v_cmp_gt_u32 vcc, v6, v5")
    A_("s_cbranch_vccnz K_WI")
    A_("s_barrier")
    battn.DS = (lambda k, idx: stamp_dyn(A_, k, idx, 1)) if PROF else None
    battn.b_role(A_, waits=True, abort="K_ABORT")
    stamp(A_, 3)
    A_(f"s_sub_u32 {s(final.fSEG)}, {s(sXCC)}, 1")
    A_(f"s_mov_b32 {s(final.fTEAMS)}, 7")
    A_("s_mov_b32 s27, 0")
    final.f_role(A_, P, waits=True, abort="K_ABORT", stamp=(lambda k: stamp(A_, k)), preissued=True, dstamp=None)
    stamp(A_, 5)
    A_("s_branch K_END")
    A_.label("K_ABORT")
    A_("s_waitcnt vmcnt(0) lgkmcnt(0)")
    A_(f"s_lshl_b32 s40, {s(sGI)}, 2")
    A_(f"s_add_u32 s40, s40, {s(sWV)}")
    A_(f"s_lshl_b32 s40, s40, 3")
    A_(f"s_add_u32 s40, s40, {WS_TIME}")
    A_("v_mov_b32 v2, s96")
    A_("v_mov_b32 v3, s97")
    A_("v_mov_b32 v4, 0")
    A_("s_mov_b64 exec, 1")
    A_(f"buffer_store_dwordx2 v[2:3], v4, {s(sWS,4)}, s40 offen")
    A_("s_waitcnt vmcnt(0)")
    A_.label("K_END")
    A_("s_endpgm")
    A_('.section .rodata,"a"'); A_(".p2align 6"); A_(f".amdhsa_kernel {NAME}")
    A_("""  .amdhsa_next_free_vgpr 512
  .amdhsa_next_free_sgpr 102
  .amdhsa_accum_offset 256
  .amdhsa_group_segment_fixed_size 0
  .amdhsa_kernarg_size 128
  .amdhsa_user_sgpr_count 2
  .amdhsa_user_sgpr_kernarg_segment_ptr 1
  .amdhsa_system_sgpr_workgroup_id_x 1
.end_amdhsa_kernel""")
    return A_.text()

if __name__ == "__main__":
    kw = {a.split('=')[0]: int(a.split('=')[1]) for a in sys.argv[2:] if '=' in a}
    PROF = bool(kw.pop('prof', 0))
    final.OFL = {0: 'sc1', 1: '', 2: 'nt', 3: 'sc0'}[kw.pop('ofl', 0)]
    out = sys.argv[1] if len(sys.argv) > 1 else "gated_mix__memory_aug_recurrent_mem_tr__grouped_kv_mqa__prompt.s"
    open(out, "w").write(gen(**kw))
    print("wrote", out)
```

```python
from asmlib import *
from layout import *

vL16, vIDX, vRED, vMST, vPUB, vHI, vMW = 1, 2, 3, 4, 5, 6, 7
vMR = [None, 8, 9, 10]
vWO, vQW, vKW, vQR, vKR, vOW = 11, 12, 13, 14, 15, 16
vFLG = 0
vKXR = 17
vSEL = 18
vT0, vT1 = 22, 23
VX, VXN = 24, 32
M = 40
ACC = 72
KXR = 96
WV = V(128); WQ = A(0); WK = A(128)
QA = [ACC+0, ACC+4]; KA = [ACC+8, ACC+12]; VA = [ACC+16, ACC+20]
def wreg(mat, slot, t):
    jj, cc = slot >> 1, slot & 1
    return mat + (jj*32 + t*16 + cc*8)

sWS, sW, sDBG = 8, 12, 16
sH, sWV, sSTEP = 20, 21, 22
sPRD = 23
sKXS, sVXS, sKMO, sVMO, sRRD, sRWR, sRRS, sPST = 24, 25, 26, 27, 28, 29, 30, 31
sKXD = 36
sKVR = 32
sFLG = 33
sLO = 34
sPRS = 37
sC = 38
sT = 40
sSPIN = 48
sTIM = 52

SPIN_MAX = 400000

def srd(A_, base, ptr_lo, nbytes):
    A_(f"s_mov_b32 {s(base)}, {s(ptr_lo)}")
    A_(f"s_and_b32 {s(base+1)}, {s(ptr_lo+1)}, 0xffff")
    A_(f"s_mov_b32 {s(base+2)}, {hex(nbytes)}")
    A_(f"s_mov_b32 {s(base+3)}, 0x20000")

def bits(A_, dst, terms, add_s=None, add_c=0, tmp=vT0):
    first = True
    for (lsb, width, shift) in terms:
        A_(f"v_bfe_u32 {v(tmp)}, v0, {lsb}, {width}")
        if first:
            A_(f"v_lshlrev_b32 {v(dst)}, {shift}, {v(tmp)}"); first = False
        else:
            A_(f"v_lshl_add_u32 {v(dst)}, {v(tmp)}, {shift}, {v(dst)}")
    if add_s is not None: A_(f"v_add_u32 {v(dst)}, {s(add_s)}, {v(dst)}")
    if add_c: A_(f"v_add_u32 {v(dst)}, {add_c}, {v(dst)}")

def lane_consts(A_):
    t = sT
    A_(f"v_lshlrev_b32 {v(vL16)}, 4, v0")
    A_(f"v_bfe_u32 {v(vT0)}, v0, 1, 1")
    A_(f"v_mov_b32 {v(vIDX)}, 0x4444")
    A_(f"v_mov_b32 {v(vT1)}, 0xeeee")
    A_(f"v_cmp_eq_u32 vcc, 1, {v(vT0)}")
    A_("s_nop 1")
    A_(f"v_cndmask_b32 {v(vIDX)}, {v(vIDX)}, {v(vT1)}, vcc")
    bits(A_, vPUB, [(0,4,4), (4,2,2)])
    A_(f"v_add_u32 {v(vHI)}, {L_HI}, {v(vL16)}")
    A_(f"s_lshl_b32 {s(t)}, {s(sWV)}, 11")
    A_(f"s_add_u32 {s(t+1)}, {s(t)}, {L_MEMI}")
    A_(f"v_add_u32 {v(vMW)}, {s(t+1)}, {v(vL16)}")
    for jj in (1, 2, 3):
        A_(f"s_xor_b32 {s(t+1)}, {s(t)}, {jj*2048}")
        A_(f"s_add_u32 {s(t+1)}, {s(t+1)}, {L_MEMI}")
        A_(f"v_add_u32 {v(vMR[jj])}, {s(t+1)}, {v(vL16)}")
    A_(f"s_lshl_b32 {s(t)}, {s(sWV)}, 15")
    A_(f"v_add_u32 {v(vWO)}, {s(t)}, {v(vL16)}")
    A_(f"s_lshl_b32 {s(t)}, {s(sWV)}, 9")
    A_(f"s_add_u32 {s(t+1)}, {s(t)}, {L_QI}")
    A_(f"v_add_u32 {v(vQW)}, {s(t+1)}, {v(vPUB)}")
    A_(f"s_add_u32 {s(t+1)}, {s(t)}, {L_KI}")
    bits(A_, vKW, [(2,2,6), (0,1,5), (4,2,3), (1,1,2)], add_s=t+1)
    bits(A_, vQR, [(5,1,8), (4,1,6), (2,2,4), (0,1,3)], add_c=L_QI)
    bits(A_, vKR, [(5,1,9), (4,1,8), (3,1,7), (2,1,5), (0,2,3)], add_c=L_KI)
    A_(f"s_lshr_b32 {s(t)}, {s(sWV)}, 1")
    A_(f"s_lshl_b32 {s(t)}, {s(t)}, 10")
    A_(f"s_and_b32 {s(t+1)}, {s(sWV)}, 1")
    A_(f"s_lshl_b32 {s(t+1)}, {s(t+1)}, 5")
    A_(f"s_add_u32 {s(t)}, {s(t)}, {s(t+1)}")
    A_(f"s_add_u32 {s(t)}, {s(t)}, {L_OI}")
    bits(A_, vOW, [(1,2,6), (0,1,4), (5,1,8), (4,1,3)], add_s=t)
    A_(f"s_lshr_b32 {s(t)}, {s(sH)}, 2")
    A_(f"s_lshl_b32 {s(t)}, {s(t)}, 10")
    A_(f"s_and_b32 {s(t+1)}, {s(sH)}, 3")
    A_(f"s_lshl_b32 {s(t+2)}, {s(t+1)}, 8")
    A_(f"s_add_u32 {s(t+2)}, {s(t+2)}, {s(t)}")
    bits(A_, vRED, [(4,2,13), (0,4,4)], add_s=t+2)
    A_(f"s_lshl_b32 {s(t+2)}, {s(t+1)}, 6")
    A_(f"s_add_u32 {s(t+2)}, {s(t+2)}, {s(t)}")
    bits(A_, vMST, [(2,2,8), (4,1,5), (5,1,4), (0,2,2)], add_s=t+2)
    bits(A_, ACC, [(2,1,1), (0,2,0)])
    A_(f"v_bfe_u32 {v(ACC+1)}, v0, 3, 1")
    A_(f"v_lshlrev_b32 {v(ACC+1)}, 4, {v(ACC+1)}")
    A_(f"v_mov_b32 {v(ACC+2)}, 0x3f80")
    A_(f"v_lshlrev_b32 {v(ACC+2)}, {v(ACC+1)}, {v(ACC+2)}")
    A_(f"v_bfe_u32 {v(ACC+3)}, v0, 1, 1")
    A_(f"v_cmp_eq_u32 vcc, 1, {v(ACC+3)}")
    A_("s_nop 1")
    A_(f"v_cndmask_b32 {v(ACC+2)}, {v(ACC+2)}, 0, vcc") if False else None
    A_(f"v_mov_b32 {v(ACC+4)}, 0")
    A_(f"v_cndmask_b32 {v(ACC+2)}, {v(ACC+2)}, {v(ACC+4)}, vcc")
    for k in range(4):
        A_(f"v_cmp_eq_u32 vcc, {k}, {v(ACC)}")
        A_("s_nop 1")
        A_(f"v_cndmask_b32 {v(vSEL+k)}, {v(ACC+4)}, {v(ACC+2)}, vcc")
    A_(f"v_add_u32 {v(vKXR)}, {L_KX0}, {v(vL16)}")

def load_weights(A_, ptr, hook_issued=None, hook_done=None):
    STG = L_HI
    vG1, vG2 = 40, 41
    vSW1 = [42, 43, 44, 45]; vSR1 = [46, 47, 48, 49]
    vSW2, vSR2 = 50, 51
    TMP = KXR
    t = sT
    A_(f"v_lshlrev_b32 {v(vL16)}, 4, v0")
    A_(f"s_lshl_b32 {s(t)}, {s(sWV)}, 15")
    A_(f"v_add_u32 {v(vWO)}, {s(t)}, {v(vL16)}")
    bits(A_, vG1, [(2,4,13), (0,2,4)])
    bits(A_, vG2, [(3,3,10), (0,3,4)])
    A_(f"s_lshl_b32 {s(t)}, {s(sWV)}, 13")
    A_(f"s_add_u32 {s(t)}, {s(t)}, {STG}")
    bits(A_, vSW1[0], [(1,1,8), (2,1,9), (4,1,10), (5,1,11), (3,1,5), (1,1,6), (2,1,7), (0,1,4)], add_s=t)
    for k in (1, 2, 3):
        A_(f"v_xor_b32 {v(vSW1[k])}, {(k&1)*64 + (k>>1)*128}, {v(vSW1[0])}")
    bits(A_, vSR1[0], [(5,1,10), (4,1,5), (2,1,6), (3,1,7), (0,2,3)], add_s=t)
    for k in (1, 2, 3):
        A_(f"v_xor_b32 {v(vSR1[k])}, {(k&1)*64 + (k>>1)*128}, {v(vSR1[0])}")
    bits(A_, vSW2, [(1,2,8), (4,1,10), (3,1,5), (5,1,6), (0,1,4)], add_s=t)
    bits(A_, vSR2, [(5,1,11), (2,1,5), (4,1,6), (3,1,7), (0,2,3)], add_s=t)

    blocks = [('o', b) for b in range(4)] + [('q', b) for b in range(4)] + [('k', b) for b in range(4)] + [('v', b) for b in range(4)]
    def land(b):
        kind, x = blocks[b]
        return {'o': V(128), 'q': WQ, 'k': WK, 'v': WV}[kind] + 32*x
    SR = {'q': 48, 'k': 52, 'v': 56, 'o': 60}
    srd(A_, SR['q'], ptr['Wq'], 4*MB); srd(A_, SR['k'], ptr['Wk'], 4*MB)
    srd(A_, SR['v'], ptr['Wv'], 4*MB); srd(A_, SR['o'], ptr['Wo'], 4*MB)
    def issue(b):
        kind, x = blocks[b]
        dst = land(b)
        if kind == 'o':
            U, th = x >> 1, x & 1
            A_(f"s_lshl_b32 {s(t)}, {s(sH)}, 17")
            A_(f"s_lshl_b32 {s(t+1)}, {s(sWV)}, 8")
            A_(f"s_add_u32 {s(t)}, {s(t)}, {s(t+1)}")
            A_(f"s_add_u32 {s(t)}, {s(t)}, {U*65536 + th*128}")
            for i in range(8):
                A_(f"buffer_load_dwordx4 {dst(4*i,4)}, {v(vG2)}, {s(SR['o'],4)}, {s(t)} offen")
                if i < 7: A_(f"s_add_u32 {s(t)}, {s(t)}, 8192")
        else:
            A_(f"s_xor_b32 {s(t)}, {s(sWV)}, {x}")
            A_(f"s_lshl_b32 {s(t)}, {s(t)}, 20")
            A_(f"s_lshl_b32 {s(t+1)}, {s(sH)}, 8")
            A_(f"s_add_u32 {s(t)}, {s(t)}, {s(t+1)}")
            A_(f"s_lshl_b32 {s(t+1)}, {s(sWV)}, 6")
            A_(f"s_add_u32 {s(t)}, {s(t)}, {s(t+1)}")
            for i in range(8):
                A_(f"buffer_load_dwordx4 {dst(4*i,4)}, {v(vG1)}, {s(SR[kind],4)}, {s(t)} offen")
                if i < 7: A_(f"s_add_u32 {s(t)}, {s(t)}, 131072")
    LOOK = 7
    for b in range(LOOK): issue(b)
    if hook_issued: hook_issued()
    for b in range(16):
        kind, x = blocks[b]
        issued = min(16, b + LOOK)
        A_(f"s_waitcnt vmcnt({8*(issued - b - 1)})")
        if b + LOOK < 16: issue(b + LOOK)
        src = land(b)
        if kind == 'o':
            U, th = x >> 1, x & 1
            for i in range(8):
                off = (i & 1)*2048 + ((i >> 1) & 1)*4096 + (i >> 2)*128
                A_(f"ds_write_b128 {v(vSW2)}, {src(4*i,4)} offset:{off}")
            A_("s_waitcnt lgkmcnt(0)")
            for tt in range(4):
                for m in range(4):
                    off = (tt + 4*(m & 1) + 16*(m >> 1))*256
                    A_(f"ds_read_b64_tr_b16 {v(TMP + tt*8 + 2*m, 2)}, {v(vSR2)} offset:{off}")
            A_("s_waitcnt lgkmcnt(0)")
            for tt in range(4):
                tl = th*4 + tt
                for hf in range(2):
                    off = (tl*2 + U)*2048 + hf*1024
                    A_(f"ds_write_b128 {v(vWO)}, {v(TMP + tt*8 + 4*hf, 4)} offset:{off}")
            A_("s_waitcnt lgkmcnt(0)")
        else:
            for i in range(8):
                A_(f"ds_write_b128 {v(vSW1[i&3])}, {src(4*i,4)} offset:{(i >> 2)*4096}")
            A_("s_waitcnt lgkmcnt(0)")
            for tl in range(2):
                for cc in range(2):
                    for m in range(4):
                        off = (tl + 2*(m & 1) + 8*(m >> 1) + 16*cc)*256
                        A_(f"ds_read_b64_tr_b16 {src(tl*16 + cc*8 + 2*m, 2)}, {v(vSR1[tl + 2*(m&1)])} offset:{off}")
            A_("s_waitcnt lgkmcnt(0)")
        if b == 7 and hook_done: hook_done()

def load_mem0(A_, ptr_lo):
    srd(A_, sW, ptr_lo, 8192)
    bits(A_, vT1, [(2,2,11), (0,1,10), (1,1,6), (4,2,3)])
    A_(f"s_lshl_b32 {s(sT)}, {s(sWV)}, 8")
    X = M + 8
    for j in range(2):
        A_(f"buffer_load_dwordx2 {v(X+4*j,2)}, {v(vT1)}, {s(sW,4)}, {s(sT)} offen offset:{128*j}")
        A_(f"buffer_load_dwordx2 {v(X+4*j+2,2)}, {v(vT1)}, {s(sW,4)}, {s(sT)} offen offset:{128*j+32}")
    A_(f"s_mov_b32 {s(sT+1)}, 0x05040100")
    A_(f"s_mov_b32 {s(sT+2)}, 0x07060302")
    A_("s_waitcnt vmcnt(0)")
    for j in range(2):
        x0, x1, y0, y1 = X+4*j, X+4*j+1, X+4*j+2, X+4*j+3
        A_(f"v_perm_b32 {v(M+4*j+0)}, {v(y0)}, {v(x0)}, {s(sT+1)}")
        A_(f"v_perm_b32 {v(M+4*j+1)}, {v(y0)}, {v(x0)}, {s(sT+2)}")
        A_(f"v_perm_b32 {v(M+4*j+2)}, {v(y1)}, {v(x1)}, {s(sT+1)}")
        A_(f"v_perm_b32 {v(M+4*j+3)}, {v(y1)}, {v(x1)}, {s(sT+2)}")

def zero(A_, base, n):
    for k in range(0, n, 2):
        A_(f"v_mov_b64 {v(base+k,2)}, 0")

def kv_wait(A_, need_s, pfx, abort):
    a_, d_ = KXR, KXR+1
    A_(f"v_mbcnt_lo_u32_b32 {v(a_)}, -1, 0")
    A_(f"v_mbcnt_hi_u32_b32 {v(a_)}, -1, {v(a_)}")
    A_(f"v_and_b32 {v(d_)}, 1, {v(a_)}")
    A_(f"v_bfe_u32 {v(a_)}, {v(a_)}, 1, 1")
    A_(f"v_lshlrev_b32 {v(a_)}, 6, {v(a_)}")
    A_(f"v_add_u32 {v(a_)}, {v(a_)}, {v(d_)}")
    A_(f"s_lshl_b32 s44, {s(sH)}, 1")
    A_(f"v_add_u32 {v(a_)}, s44, {v(a_)}")
    A_(f"v_lshlrev_b32 {v(a_)}, 7, {v(a_)}")
    A_(f"s_mov_b32 s45, {FL_G}")
    A_("s_mov_b32 s96, 3")
    A_(f"s_mov_b32 {s(sSPIN)}, 0")
    A_.label(pfx)
    A_(f"buffer_load_dword {v(d_)}, {v(a_)}, {s(sWS,4)}, s45 offen sc1")
    A_(f"s_add_u32 {s(sSPIN)}, {s(sSPIN)}, 1")
    A_(f"s_cmp_gt_u32 {s(sSPIN)}, {SPIN_MAX*4}")
    A_(f"s_cbranch_scc1 {abort}")
    A_("s_waitcnt vmcnt(0)")
    A_(f"v_readlane_b32 s44, {v(d_)}, 0")
    A_(f"v_readlane_b32 s46, {v(d_)}, 2")
    A_("s_nop 3")
    A_(f"s_min_u32 s44, s44, s46")
    A_(f"s_lshl_b32 {s(sKVR)}, s44, 1")
    A_(f"v_readlane_b32 s44, {v(d_)}, 1")
    A_(f"v_readlane_b32 s46, {v(d_)}, 3")
    A_("s_nop 3")
    A_(f"s_min_u32 s44, s44, s46")
    A_(f"s_lshl_b32 s44, s44, 1")
    A_(f"s_add_u32 s44, s44, 1")
    A_(f"s_min_u32 {s(sKVR)}, {s(sKVR)}, s44")
    A_(f"s_cmp_ge_u32 {s(sKVR)}, {s(need_s)}")
    A_(f"s_cbranch_scc0 {pfx}")

def chain_tail(A_):
    def smf(d, areg, breg):
        A_(f"v_smfmac_f32_16x16x64_bf16 {v(d,4)}, {v(areg,4)}, {breg}, {v(vIDX)}")
    def W(mat, slot, t): return wreg(mat, slot, t)(0, 8)
    A_("s_waitcnt lgkmcnt(0)")
    A_("s_barrier")
    for j in range(2, 8): A_(f"ds_read_b128 {v(M+4*j,4)}, {v(vMR[j>>1])} offset:{(j&1)*1024}")
    A_(f"v_mov_b32 {v(vT1)}, {s(sSTEP)}")
    A_(f"buffer_store_dword {v(vT1)}, {v(vFLG)}, {s(sWS,4)}, {s(sFLG)} offen sc1")
    A_("s_waitcnt lgkmcnt(0)")
    for j in range(8):
        for t in range(2):
            smf(KA[t], M+4*j, W(WK,j,t)); smf(VA[t], M+4*j, W(WV,j,t))
    A_("s_nop 7"); A_("s_nop 3")
    for r in (KA[0], KA[1], VA[0], VA[1]):
        A_(f"v_add_f32 {v(r)}, {v(r)}, {v(r+2)}")
        A_(f"v_add_f32 {v(r+1)}, {v(r+1)}, {v(r+3)}")
        A_(f"v_cvt_pk_bf16_f32 {v(r)}, {v(r)}, {v(r+1)}")
    A_(f"buffer_store_dword {v(KA[0])}, {v(vPUB)}, {s(sWS,4)}, {s(sKMO)} offen sc1")
    A_(f"buffer_store_dword {v(KA[1])}, {v(vPUB)}, {s(sWS,4)}, {s(sKMO)} offen offset:256 sc1")
    A_(f"buffer_store_dword {v(VA[0])}, {v(vPUB)}, {s(sWS,4)}, {s(sVMO)} offen sc1")
    A_(f"buffer_store_dword {v(VA[1])}, {v(vPUB)}, {s(sWS,4)}, {s(sVMO)} offen offset:256 sc1")
    A_("s_waitcnt vmcnt(0)")
    A_("s_barrier")
    A_(f"v_mov_b32 {v(vT1)}, 64")
    A_(f"buffer_store_dword {v(vT1)}, {v(vFLG)}, {s(sWS,4)}, {s(sFLG)} offen sc1")
    A_("s_waitcnt vmcnt(0)")


def chain_loop(A_, nsteps, timing=False, abl=(), RW=0, d1=0, d2=0, cut=-1, cnt=0, trace=0, flags=False, ovp=0, ovm=0, dov=4, probe=-1, dstamp=None, fast=1, **unused):
    LOOP, POLLM, POLLP, ABORT, DONE, NOTRED = "CH_LOOP", "CH_POLLM", "CH_POLLP", "CH_ABORT", "CH_DONE", "CH_NOTRED"
    S0, S1, Sm = M+8, M+12, M+16
    Qop = [M, M+4, ACC, ACC+4]
    KMop = [ACC+8, ACC+12]
    P1, PM = M, M+4
    ONE = M+20
    VMp = [VA[0], VA[1]]
    O0, O1, L = ACC+4, ACC+8, ACC+12
    OC = ACC+20
    FB = [KXR, KXR+8, KXR+16, KXR+24, ACC, ACC+8, ACC+16]
    OP = VX
    RD = ACC
    def mark(k):
        if probe == k:
            A_("s_memtime s[62:63]")
        if cut == k:
            A_("s_waitcnt lgkmcnt(0)")
            A_(f"s_add_u32 {s(sSTEP)}, {s(sSTEP)}, 1")
            A_("s_branch CH_CUT")
    def emit(txt, fill):
        A_(txt)
        for f in fill:
            if f: A_(f)
    def smf(d, areg, breg, *fill): emit(f"v_smfmac_f32_16x16x64_bf16 {v(d,4)}, {v(areg,4)}, {breg}, {v(vIDX)}", fill)
    def mf(txt, *fill): emit(txt, fill)
    def W(mat, slot, t): return wreg(mat, slot, t)(0, 8)
    def frag(fr, hf):
        b = FB[fr % 7]
        return f"ds_read_b128 {v(b+4*hf,4)}, {v(vWO)} offset:{fr*2048+1024*hf}"
    def mread(j): return f"ds_read_b128 {v(M+4*j,4)}, {v(vMR[j>>1])} offset:{(j&1)*1024}"
    def kxread(k): return f"ds_read_b128 {v(KXR+4*k,4)}, {v(vKXR)} offset:{k*1024}"
    def qtr(u, m): return f"ds_read_b64_tr_b16 {v(Qop[u]+2*m,2)}, {v(vQR)} offset:{512*u+128*m}"
    def kmtr(U, m): return f"ds_read_b64_tr_b16 {v(KMop[U]+2*m,2)}, {v(vKR)} offset:{1024*U+64*m}"
    def add(d, a_, b_): return f"v_add_f32 {v(d)}, {v(a_)}, {v(b_)}"
    def cvt(d, a_, b_): return f"v_cvt_pk_bf16_f32 {v(d)}, {v(a_)}, {v(b_)}"
    def mov64(d, src): return f"v_mov_b64 {v(d,2)}, {src}"
    def sx(T, u, first, *fill):
        d = (S0, S1)[T]
        c = (v(ONE,4) if fast else "0") if first else v(d,4)
        emit(f"v_mfma_f32_16x16x32_bf16 {v(d,4)}, {v(KXR+(T*4+u)*4,4)}, {v(Qop[u],4)}, {c}", fill)
    def st1(src, off_s, off): return f"buffer_store_dword {v(src)}, {v(vPUB)}, {s(sWS,4)}, {s(off_s)} offen offset:{off} sc1"

    A_("s_branch CH_A")
    A_.label(LOOP)
    A_(f"s_cmp_eq_u32 {s(sWV)}, {RW}")
    A_(f"s_cbranch_scc0 {NOTRED}")
    for _ in range(d1): A_("s_nop 7")
    if trace: A_("s_memtime s[62:63]")
    A_(f"s_mov_b32 {s(sSPIN)}, 0")
    A_("s_mov_b32 s96, 4")
    PRS = [KXR, M] if ovp else [KXR]
    def pissue(PR):
        A_(f"s_mov_b32 {s(sT)}, {s(sPRD)}")
        for u in range(8):
            A_(f"buffer_load_dwordx4 {v(PR+4*u,4)}, {v(vRED)}, {s(sWS,4)}, {s(sT)} offen sc1")
            if u < 7: A_(f"s_add_u32 {s(sT)}, {s(sT)}, {4*8192}")
    def pcheck(PR, younger):
        for u in range(8):
            A_(f"s_waitcnt vmcnt({7-u+younger})")
            c = "0" if u == 0 else v(RD,4)
            A_(f"v_mfma_f32_16x16x32_bf16 {v(RD,4)}, {v(vSEL,4)}, {v(PR+4*u,4)}, {c}")
            if u == 1: A_(f"v_max_u32 {v(vT0)}, {v(PR)}, {v(PR+4)}")
            if u in (3, 5, 7): A_(f"v_max3_u32 {v(vT0)}, {v(vT0)}, {v(PR+4*(u-1))}, {v(PR+4*u)}")
        A_(f"v_cmp_eq_u32 vcc, -1, {v(vT0)}")
        A_("s_nop 5")
        A_(cvt(RD, RD, RD+1))
        A_(f"v_min_u32 {v(RD)}, -2, {v(RD)}")
    def spin():
        A_(f"s_add_u32 {s(sSPIN)}, {s(sSPIN)}, 1")
        A_(f"s_cmp_gt_u32 {s(sSPIN)}, {SPIN_MAX}")
        A_(f"s_cbranch_scc1 {ABORT}")
    if not ovp:
        A_.label(POLLP)
        if cnt: A_("s_add_u32 s81, s81, 1")
        pissue(KXR); spin(); pcheck(KXR, 0)
        A_(f"s_cbranch_vccnz {POLLP}")
    else:
        pissue(KXR)
        for _ in range(dov): A_("s_nop 7")
        A_.label(POLLP)
        if cnt: A_("s_add_u32 s81, s81, 1")
        pissue(M); spin(); pcheck(KXR, 8)
        A_("s_cbranch_vccz CH_PDONE")
        if cnt: A_("s_add_u32 s81, s81, 1")
        pissue(KXR); spin(); pcheck(M, 8)
        A_(f"s_cbranch_vccnz {POLLP}")
        A_.label("CH_PDONE")
    if trace:
        A_("s_memtime s[64:65]")
        A_(f"s_mov_b32 s68, {s(sSPIN)}")
    A_(f"buffer_store_dword {v(RD)}, {v(vMST)}, {s(sWS,4)}, {s(sRWR)} offen")
    A_("s_barrier")
    A_(f"v_mov_b32 {v(vT1)}, -1")
    A_(f"buffer_store_dword {v(vT1)}, {v(vMST)}, {s(sWS,4)}, {s(sRRS)} offen")
    A_("s_branch CH_HK")
    A_.label(NOTRED)
    A_("s_barrier")
    A_.label("CH_HK")
    A_(f"v_xor_b32 {v(vKXR)}, {L_KX0 ^ L_KX1}, {v(vKXR)}")
    A_(f"s_xor_b32 {s(sKXD)}, {s(sKXD)}, {L_KX0 ^ L_KX1}")
    A_(f"s_add_u32 {s(sSTEP)}, {s(sSTEP)}, 1")
    A_(f"s_xor_b32 {s(sPST)}, {s(sPST)}, {PART_SLOT}")
    A_(f"s_xor_b32 {s(sPRD)}, {s(sPRD)}, {PART_SLOT}")
    A_(f"s_xor_b32 {s(sPRS)}, {s(sPST)}, {PART_SLOT}")
    A_(f"s_cmp_lt_u32 {s(sSTEP)}, 63")
    A_(f"s_cselect_b32 {s(sT)}, {32*8192}, 0")
    A_(f"s_add_u32 {s(sKXS)}, {s(sKXS)}, {s(sT)}")
    A_(f"s_add_u32 {s(sVXS)}, {s(sVXS)}, {s(sT)}")
    A_(f"s_add_u32 {s(sKMO)}, {s(sKMO)}, {32*2048}")
    A_(f"s_add_u32 {s(sVMO)}, {s(sVMO)}, {32*2048}")
    A_(f"s_mov_b32 {s(sRRS)}, {s(sRWR)}")
    A_(f"s_add_u32 {s(sRWR)}, {s(sRWR)}, 8192")
    A_(f"s_cmp_ge_u32 {s(sRWR)}, {WS_RING + 3*8192}")
    A_(f"s_cselect_b32 {s(sT)}, {3*8192}, 0")
    A_(f"s_sub_u32 {s(sRWR)}, {s(sRWR)}, {s(sT)}")
    A_(f"s_lshl_b32 {s(sT)}, {s(sWV)}, 11")
    A_(f"s_add_u32 {s(sRRD)}, {s(sRRS)}, {s(sT)}")
    if dstamp: dstamp()
    zero(A_, ACC, 24)
    if ovp: A_("s_waitcnt vmcnt(2)")
    for k in range(4): A_(f"v_mov_b32 {v(KXR+28+k)}, -1")
    if flags:
        A_(f"s_add_u32 {s(sT)}, {s(sSTEP)}, 2")
        A_(f"s_min_u32 {s(sT)}, {s(sT)}, 64")
        A_(f"s_cmp_le_u32 {s(sT)}, {s(sKVR)}")
        A_("s_cbranch_scc1 CH_KVOK")
        kv_wait(A_, sT, "CH_KVW", ABORT)
        A_.label("CH_KVOK")
    for _ in range(d2): A_("s_nop 7")
    A_(f"s_mov_b32 {s(sSPIN)}, 0")
    A_("s_mov_b32 s96, 5")
    def missue(R):
        A_(f"buffer_load_dwordx4 {v(R,4)}, {v(vL16)}, {s(sWS,4)}, {s(sRRD)} offen sc1")
        A_(f"buffer_load_dwordx4 {v(R+4,4)}, {v(vL16)}, {s(sWS,4)}, {s(sRRD)} offen offset:1024 sc1")
    def mcheck(R, younger):
        A_(f"s_waitcnt vmcnt({younger})")
        A_(f"v_max_u32 {v(vT0)}, {v(R)}, {v(R+4)}")
        A_(f"v_cmp_eq_u32 vcc, -1, {v(vT0)}")
        A_(f"ds_write_b128 {v(vMW)}, {v(R,4)}")
        A_(f"ds_write_b128 {v(vMW)}, {v(R+4,4)} offset:1024")
    if not ovm:
        A_.label(POLLM)
        if cnt: A_("s_add_u32 s82, s82, 1")
        missue(M); spin()
        A_(f"s_cmp_eq_u32 {s(sSTEP)}, {nsteps}")
        mcheck(M, 0)
        A_(f"s_cbranch_vccnz {POLLM}")
    else:
        R2 = KXR
        missue(M)
        for _ in range(dov): A_("s_nop 7")
        A_.label(POLLM)
        if cnt: A_("s_add_u32 s82, s82, 1")
        missue(R2); spin()
        mcheck(M, 2)
        A_("s_cbranch_vccz CH_MOK")
        if cnt: A_("s_add_u32 s82, s82, 1")
        missue(M); spin()
        mcheck(R2, 2)
        A_(f"s_cbranch_vccnz {POLLM}")
        for k in range(0, 8, 2): A_(mov64(M+k, v(R2+k,2)))
        A_.label("CH_MOK")
        A_(f"s_cmp_eq_u32 {s(sSTEP)}, {nsteps}")
    if trace:
        A_("s_memtime s[66:67]")
        A_("s_waitcnt lgkmcnt(0)")
        A_(f"s_lshl_b32 {s(sT)}, {s(sH)}, 2"); A_(f"s_add_u32 {s(sT)}, {s(sT)}, {s(sWV)}")
        A_(f"s_lshl_b32 {s(sT)}, {s(sT)}, 6"); A_(f"s_add_u32 {s(sT)}, {s(sT)}, {s(sSTEP)}")
        A_(f"s_lshl_b32 {s(sT)}, {s(sT)}, 5"); A_(f"s_add_u32 {s(sT)}, {s(sT)}, {WS_TIME + 65536}")
        for k, r in enumerate((60, 62, 64, 66, 68, sSPIN)):
            A_(f"v_mov_b32 {v(KXR+16+k)}, s{r}")
        A_("s_mov_b64 exec, 1")
        A_(f"v_mov_b32 {v(KXR+24)}, 0")
        A_(f"buffer_store_dwordx4 {v(KXR+16,4)}, {v(KXR+24)}, {s(sWS,4)}, {s(sT)} offen")
        A_(f"buffer_store_dwordx2 {v(KXR+20,2)}, {v(KXR+24)}, {s(sWS,4)}, {s(sT)} offen offset:16")
        A_("s_mov_b64 exec, -1")
        A_(f"s_cmp_eq_u32 {s(sSTEP)}, {nsteps}")
    A_(f"s_cbranch_scc1 {DONE}")
    A_.label("CH_A")
    if trace or probe >= 0: A_("s_memtime s[60:61]")
    mark(0)
    smf(QA[0], M,   W(WQ,0,0), f"buffer_store_dwordx4 {v(KXR+28,4)}, {v(vL16)}, {s(sWS,4)}, {s(sPRS)} offen", f"s_mov_b32 m0, {s(sKXD)}")
    smf(QA[1], M,   W(WQ,0,1), f"buffer_store_dwordx4 {v(KXR+28,4)}, {v(vL16)}, {s(sWS,4)}, {s(sPRS)} offen offset:1024", f"s_add_u32 {s(sT)}, {s(sKXD)}, 1024", mov64(VX, v(VXN,2)))
    smf(KA[0], M,   W(WK,0,0), f"buffer_load_dwordx4 {v(vL16)}, {s(sWS,4)}, {s(sKXS)} offen lds", f"s_mov_b32 m0, {s(sT)}", mov64(VX+2, v(VXN+2,2)))
    smf(KA[1], M,   W(WK,0,1), f"s_add_u32 {s(sT+1)}, {s(sKXS)}, 1024", mov64(VX+4, v(VXN+4,2)))
    smf(QA[0], M+4, W(WQ,1,0), f"buffer_load_dwordx4 {v(vL16)}, {s(sWS,4)}, {s(sT+1)} offen lds", mov64(VX+6, v(VXN+6,2)))
    smf(QA[1], M+4, W(WQ,1,1), f"buffer_load_dwordx4 {v(VXN,4)}, {v(vL16)}, {s(sWS,4)}, {s(sVXS)} offen")
    smf(KA[0], M+4, W(WK,1,0), f"buffer_load_dwordx4 {v(VXN+4,4)}, {v(vL16)}, {s(sWS,4)}, {s(sVXS)} offen offset:1024")
    smf(KA[1], M+4, W(WK,1,1))
    smf(VA[0], M,   W(WV,0,0), "s_waitcnt lgkmcnt(0)", "s_barrier")
    smf(VA[1], M,   W(WV,0,1), mread(2), mread(3), f"v_mov_b32 {v(vT1)}, {s(sSTEP)}" if flags else None)
    smf(VA[0], M+4, W(WV,1,0), mread(4), mread(5))
    smf(VA[1], M+4, W(WV,1,1), mread(6), mread(7))
    if flags: A_(f"buffer_store_dword {v(vT1)}, {v(vFLG)}, {s(sWS,4)}, {s(sFLG)} offen sc1")
    mark(1)
    nA = 6 + (1 if flags else 0) + 0
    if ovm: A_(f"s_waitcnt vmcnt({nA})")
    nk = 0
    for j in range(2, 8):
        A_(f"s_waitcnt lgkmcnt({(7 - j) + nk})")
        smf(QA[0], M+4*j, W(WQ,j,0), kxread(nk) if nk < 8 else None); nk += 1 if nk < 8 else 0
        smf(QA[1], M+4*j, W(WQ,j,1), kxread(nk) if (nk < 8 and j >= 4) else None); nk += 1 if (nk < 8 and j >= 4) else 0
    assert nk == 8, nk
    mark(2)
    def mulc(r): return f"v_mul_f32 {v(r)}, {s(sC)}, {v(r)}"
    if not fast:
        fills = {2: [add(QA[0], QA[0], QA[0]+2)], 3: [add(QA[0]+1, QA[0]+1, QA[0]+3)],
                 4: [add(QA[1], QA[1], QA[1]+2)], 5: [add(QA[1]+1, QA[1]+1, QA[1]+3)],
                 6: [cvt(vT0, QA[0], QA[0]+1)], 7: [cvt(vT1, QA[1], QA[1]+1)],
                 8: [f"ds_write_b32 {v(vQW)}, {v(vT0)}"], 9: [f"ds_write_b32 {v(vQW)}, {v(vT1)} offset:256"]}
    else:
        fills = {2: [add(QA[0], QA[0], QA[0]+2), add(QA[0]+1, QA[0]+1, QA[0]+3)],
                 3: [add(QA[1], QA[1], QA[1]+2), add(QA[1]+1, QA[1]+1, QA[1]+3)],
                 4: [mulc(QA[0]), mulc(QA[0]+1)], 5: [mulc(QA[1]), mulc(QA[1]+1)],
                 6: [cvt(vT0, QA[0], QA[0]+1)], 7: [cvt(vT1, QA[1], QA[1]+1)],
                 8: [f"ds_write_b32 {v(vQW)}, {v(vT0)}"], 9: [f"ds_write_b32 {v(vQW)}, {v(vT1)} offset:256"]}
    kq = [(j, t) for j in range(2, 8) for t in range(2)]
    for n, (j, t) in enumerate(kq):
        smf(KA[t], M+4*j, W(WK,j,t), *fills.get(n, []))
    mark(3)
    fills = {1: ["s_waitcnt lgkmcnt(0)", "s_barrier"],
             2: [qtr(0,0), qtr(0,1), add(KA[0], KA[0], KA[0]+2)],
             3: [qtr(1,0), qtr(1,1), add(KA[0]+1, KA[0]+1, KA[0]+3)],
             4: [qtr(2,0), qtr(2,1), add(KA[1], KA[1], KA[1]+2)],
             5: [qtr(3,0), qtr(3,1), add(KA[1]+1, KA[1]+1, KA[1]+3)],
             6: [cvt(vT0, KA[0], KA[0]+1)],
             7: [f"ds_write_b32 {v(vKW)}, {v(vT0)}", cvt(vT1, KA[1], KA[1]+1)],
             8: [f"ds_write_b32 {v(vKW)}, {v(vT1)} offset:256", st1(vT0, sKMO, 0)],
             9: [st1(vT1, sKMO, 256)],
             11: ["s_waitcnt lgkmcnt(2)"]}
    NEG8 = "0xc1000000"
    if fast:
        fills[8] = fills[8] + [f"v_mov_b32 {v(ONE)}, {NEG8}"]
        fills[9] = fills[9] + [f"v_mov_b32 {v(ONE+1)}, {NEG8}"]
        fills[10] = [f"v_mov_b32 {v(ONE+2)}, {NEG8}", f"v_mov_b32 {v(ONE+3)}, {NEG8}"]
    for n, (j, t) in enumerate(kq):
        mark(20+n)
        smf(VA[t], M+4*j, W(WV,j,t), *fills.get(n, []))
    mark(4)
    if fast: sx(0, 0, True, f"v_mov_b32 {v(Sm)}, {NEG8}", f"v_mov_b32 {v(Sm+1)}, {NEG8}")
    else: sx(0, 0, True, mov64(Sm, "0"))
    sx(1, 0, True, "s_waitcnt lgkmcnt(0)", "s_barrier", mov64(Sm+2, "0"))
    sx(0, 1, False, kmtr(0,0), kmtr(0,1), add(VA[0], VA[0], VA[0]+2), add(VA[0]+1, VA[0]+1, VA[0]+3))
    sx(1, 1, False, kmtr(1,0), kmtr(1,1), add(VA[1], VA[1], VA[1]+2), add(VA[1]+1, VA[1]+1, VA[1]+3))
    sx(0, 2, False, cvt(VA[0], VA[0], VA[0]+1), cvt(VA[1], VA[1], VA[1]+1))
    sx(1, 2, False, st1(VA[0], sVMO, 0), f"v_mov_b32 {v(VA[0]+1)}, 0", f"v_mov_b32 {v(VA[1]+1)}, 0")
    ONES = [f"v_mov_b32 {v(ONE+k)}, 0x3f803f80" for k in range(4)] if fast else [None]*4
    sx(0, 3, False, st1(VA[1], sVMO, 256), ONES[0], ONES[1])
    sx(1, 3, False, "s_waitcnt lgkmcnt(0)", ONES[2], ONES[3])
    mark(5)
    if not fast:
        smf(Sm, KMop[0], v(M,8), frag(0,0), frag(0,1))
        smf(Sm, KMop[1], v(ACC,8), frag(1,0), frag(1,1))
        A_(f"v_max3_f32 {v(vT0)}, {v(S0)}, {v(S0+1)}, {v(S0+2)}")
        A_(f"v_max3_f32 {v(vT1)}, {v(S1)}, {v(S1+1)}, {v(S1+2)}")
        A_(frag(2,0)); A_(frag(2,1))
        A_(f"v_max3_f32 {v(vT0)}, {v(vT0)}, {v(S0+3)}, {v(S1+3)}")
        A_(frag(3,0)); A_(frag(3,1))
        A_(f"v_mov_b32 {v(ONE)}, 0x3f803f80")
        A_(f"v_max_f32 {v(vT0)}, {v(vT0)}, {v(vT1)}")
        mark(6)
        A_(add(Sm, Sm, Sm+2))
        A_(add(Sm+1, Sm+1, Sm+3))
        A_(f"v_mov_b32 {v(ONE+1)}, 0x3f803f80")
        A_(f"v_max3_f32 {v(vT0)}, {v(vT0)}, {v(Sm)}, {v(Sm+1)}")
        A_(f"v_mov_b32 {v(PM+1)}, 0")
        A_(f"v_mov_b32 {v(vT1)}, {v(vT0)}")
        A_(f"v_mov_b32 {v(ONE+2)}, 0x3f803f80")
        A_(f"v_mov_b32 {v(ONE+3)}, 0x3f803f80")
        A_(f"v_permlane16_swap_b32 {v(vT0)}, {v(vT1)}")
        A_(mov64(M+24, "0"))
        A_(f"v_max_f32 {v(vT0)}, {v(vT0)}, {v(vT1)}")
        A_(f"v_mov_b32 {v(vT1)}, {v(vT0)}")
        A_(mov64(M+26, "0"))
        A_(mov64(M+28, "0"))
        A_(f"v_permlane32_swap_b32 {v(vT0)}, {v(vT1)}")
        A_(mov64(M+30, "0"))
        A_(f"v_max_f32 {v(vT0)}, {v(vT0)}, {v(vT1)}")
        A_(f"v_mul_f32 {v(vT0)}, {s(sC)}, {v(vT0)}")
        mark(7)
        for r in (S0, S0+2, S1, S1+2, Sm):
            A_(f"v_pk_fma_f32 {v(r,2)}, {v(r,2)}, {s(sC,2)}, {v(vT0,2)} op_sel_hi:[1,1,0] neg_lo:[0,0,1] neg_hi:[0,0,1]")
        for r in (S0, S0+1, S0+2, S0+3, S1, S1+1, S1+2, S1+3, Sm, Sm+1):
            A_(f"v_exp_f32 {v(r)}, {v(r)}")
        A_(cvt(P1, S0, S0+1)); A_(cvt(P1+1, S0+2, S0+3)); A_(cvt(P1+2, S1, S1+1)); A_(cvt(P1+3, S1+2, S1+3))
        A_(cvt(PM, Sm, Sm+1))
        mark(8)
        A_("s_nop 0")
        mf(f"v_mfma_f32_16x16x32_bf16 {v(L,4)}, {v(ONE,4)}, {v(P1,4)}, 0", mov64(M+6, "0"), mov64(M+8, "0"))
        mf(f"v_mfma_f32_16x16x32_bf16 {v(O0,4)}, {v(VX,4)}, {v(P1,4)}, 0", mov64(M+10, "0"), mov64(M+12, "0"))
        mf(f"v_mfma_f32_16x16x32_bf16 {v(O1,4)}, {v(VX+4,4)}, {v(P1,4)}, 0", mov64(M+14, "0"), mov64(M+16, "0"))
        mf(f"v_mfma_f32_16x16x16_bf16 {v(L,4)}, {v(ONE,2)}, {v(PM,2)}, {v(L,4)}", mov64(M+18, "0"))
        mf(f"v_mfma_f32_16x16x16_bf16 {v(O0,4)}, {v(VMp[0],2)}, {v(PM,2)}, {v(O0,4)}", mov64(M, "0"), mov64(M+2, "0"))
        mf(f"v_mfma_f32_16x16x16_bf16 {v(O1,4)}, {v(VMp[1],2)}, {v(PM,2)}, {v(O1,4)}", mov64(M+20, "0"), mov64(M+22, "0"))
        mark(9)
        A_(f"v_rcp_f32 {v(vT0)}, {v(L)}")
        A_(mov64(M+4, "0"))
        A_("s_nop 3")
        for r in (O0, O0+2, O1, O1+2):
            A_(f"v_pk_mul_f32 {v(r,2)}, {v(r,2)}, {v(vT0,2)} op_sel_hi:[1,0]")
        A_(cvt(OC, O0, O0+1)); A_(cvt(OC+1, O0+2, O0+3))
        A_(cvt(OC+2, O1, O1+1))
        A_(f"ds_write_b64 {v(vOW)}, {v(OC,2)}")
        A_(cvt(OC+3, O1+2, O1+3))
        A_(f"ds_write_b64 {v(vOW)}, {v(OC+2,2)} offset:512")
    else:
        smf(Sm, KMop[0], v(M,8), frag(0,0), frag(0,1))
        smf(Sm, KMop[1], v(ACC,8), frag(1,0), frag(1,1), f"v_mov_b32 {v(PM+1)}, 0")
        E = ACC
        A_(frag(2,0)); A_(frag(2,1))
        for k in range(4): A_(f"v_exp_f32 {v(E+k)}, {v(S0+k)}")
        A_(frag(3,0)); A_(frag(3,1))
        for k in range(4): A_(f"v_exp_f32 {v(E+4+k)}, {v(S1+k)}")
        mark(6)
        A_(add(Sm, Sm, Sm+2))
        A_(add(Sm+1, Sm+1, Sm+3))
        A_(cvt(P1, E, E+1))
        A_(f"v_exp_f32 {v(E+8)}, {v(Sm)}")
        A_(f"v_exp_f32 {v(E+9)}, {v(Sm+1)}")
        A_(cvt(P1+1, E+2, E+3)); A_(cvt(P1+2, E+4, E+5)); A_(cvt(P1+3, E+6, E+7))
        A_(cvt(PM, E+8, E+9))
        mark(8)
        def pvs():
            mf(f"v_mfma_f32_16x16x32_bf16 {v(L,4)}, {v(ONE,4)}, {v(P1,4)}, 0", mov64(M+24, "0"), mov64(M+26, "0"))
            mf(f"v_mfma_f32_16x16x32_bf16 {v(O0,4)}, {v(VX,4)}, {v(P1,4)}, 0", mov64(M+28, "0"), mov64(M+30, "0"))
            mf(f"v_mfma_f32_16x16x32_bf16 {v(O1,4)}, {v(VX+4,4)}, {v(P1,4)}, 0", mov64(M+6, "0"), mov64(M+18, "0"))
            mf(f"v_mfma_f32_16x16x16_bf16 {v(L,4)}, {v(ONE,2)}, {v(PM,2)}, {v(L,4)}", "s_nop 1")
            mf(f"v_mfma_f32_16x16x16_bf16 {v(O0,4)}, {v(VMp[0],2)}, {v(PM,2)}, {v(O0,4)}", "s_nop 1")
            mf(f"v_mfma_f32_16x16x16_bf16 {v(O1,4)}, {v(VMp[1],2)}, {v(PM,2)}, {v(O1,4)}", "s_nop 1")
        A_("s_nop 0")
        pvs()
        mark(9)
        A_(f"v_rcp_f32 {v(vT0)}, {v(L)}")
        A_(f"v_cmp_nle_f32 vcc, {v(L)}, 1.0") if False else None
        A_(f"v_cmp_nge_f32 vcc, 1.0, {v(L)}")
        A_(f"v_cmp_nle_f32 {s(sT+4,2)}, {s(sLO)}, {v(L)}")
        A_("s_nop 1")
        for r in (O0, O0+2, O1, O1+2):
            A_(f"v_pk_mul_f32 {v(r,2)}, {v(r,2)}, {v(vT0,2)} op_sel_hi:[1,0]")
        A_(f"s_or_b64 vcc, vcc, {s(sT+4,2)}")
        A_("s_cbranch_vccnz CH_FB")
        A_.label("CH_CVT")
        A_(cvt(OC, O0, O0+1)); A_(cvt(OC+1, O0+2, O0+3))
        A_(cvt(OC+2, O1, O1+1))
        A_(f"ds_write_b64 {v(vOW)}, {v(OC,2)}")
        A_(cvt(OC+3, O1+2, O1+3))
        A_(f"ds_write_b64 {v(vOW)}, {v(OC+2,2)} offset:512")
        for r in (0, 2, 4, 8, 10, 12, 14, 16, 20, 22): A_(mov64(M+r, "0"))
    mark(10)
    A_("s_waitcnt lgkmcnt(0)")
    A_("s_barrier")
    A_(f"ds_read_b128 {v(OP,4)}, {v(vHI)} offset:{L_OI-L_HI}")
    A_(f"ds_read_b128 {v(OP+4,4)}, {v(vHI)} offset:{L_OI-L_HI+1024}")
    for fr in (4, 5, 6): A_(frag(fr,0)); A_(frag(fr,1))
    A_(f"s_waitcnt vmcnt({9 if flags else 8})")
    A_("s_waitcnt lgkmcnt(6)")
    mark(11)
    outstanding = [4, 5, 6]
    def tile_post(t):
        b = M + 4*t; st = M + 16*(t >> 2) + (t & 3)
        ops = [add(b, b, b+2), add(b+1, b+1, b+3), cvt(st, b, b+1)]
        if (t & 3) == 0: ops.append(f"v_min_u32 {v(st)}, -2, {v(st)}")
        return ops
    def pstore(th):
        return f"buffer_store_dwordx4 {v(M+16*th,4)}, {v(vL16)}, {s(sWS,4)}, {s(sPST)} offen offset:{th*1024}"
    pend = []
    for fr in range(16):
        t, U = fr >> 1, fr & 1
        if fr in outstanding:
            k = outstanding.index(fr)
            A_(f"s_waitcnt lgkmcnt({2*(len(outstanding)-k-1)})")
            outstanding = outstanding[k+1:]
        fill = []
        if fr + 7 < 16:
            fill += [frag(fr+7, 0), frag(fr+7, 1)]; outstanding.append(fr + 7)
        if fr == 12: fill.append(pstore(0))
        if fr >= 4 and (fr & 1) == 0:
            pend += tile_post((fr - 4) >> 1)
        vf = pend[:2]; pend = pend[2:]
        mark(40+fr)
        smf(M+4*t, OP+4*U, v(FB[fr%7],8), *(fill + vf))
    assert not pend
    mark(12)
    for o in tile_post(6): A_(o)
    A_("s_nop 3")
    for o in tile_post(7): A_(o)
    A_(pstore(1))
    mark(13)
    if probe >= 0:
        A_("s_waitcnt lgkmcnt(0)")
        A_("s_sub_u32 s62, s62, s60")
        A_("s_add_u32 s80, s80, s62")
    A_(f"s_branch {LOOP}")
    if fast:
        A_.label("CH_FB")
        A_(f"v_max3_f32 {v(vT0)}, {v(S0)}, {v(S0+1)}, {v(S0+2)}")
        A_(f"v_max3_f32 {v(vT1)}, {v(S1)}, {v(S1+1)}, {v(S1+2)}")
        A_(f"v_max3_f32 {v(vT0)}, {v(vT0)}, {v(S0+3)}, {v(S1+3)}")
        A_(f"v_max3_f32 {v(vT1)}, {v(vT1)}, {v(Sm)}, {v(Sm+1)}")
        A_(f"v_max_f32 {v(vT0)}, {v(vT0)}, {v(vT1)}")
        A_(f"v_mov_b32 {v(vT1)}, {v(vT0)}")
        A_("s_nop 1")
        A_(f"v_permlane16_swap_b32 {v(vT0)}, {v(vT1)}")
        A_("s_nop 0")
        A_(f"v_max_f32 {v(vT0)}, {v(vT0)}, {v(vT1)}")
        A_(f"v_mov_b32 {v(vT1)}, {v(vT0)}")
        A_("s_nop 1")
        A_(f"v_permlane32_swap_b32 {v(vT0)}, {v(vT1)}")
        A_("s_nop 0")
        A_(f"v_max_f32 {v(vT0)}, {v(vT0)}, {v(vT1)}")
        for k, r in enumerate((S0, S0+1, S0+2, S0+3, S1, S1+1, S1+2, S1+3, Sm, Sm+1)):
            A_(f"v_sub_f32 {v(ACC+k)}, {v(r)}, {v(vT0)}")
        for k in range(10): A_(f"v_exp_f32 {v(ACC+k)}, {v(ACC+k)}")
        A_("s_nop 0")
        for k in range(4): A_(cvt(P1+k, ACC+2*k, ACC+2*k+1))
        A_(cvt(PM, ACC+8, ACC+9))
        A_("s_nop 1")
        pvs()
        A_("s_nop 7")
        A_(f"v_rcp_f32 {v(vT0)}, {v(L)}")
        A_("s_nop 0")
        for r in (O0, O0+2, O1, O1+2):
            A_(f"v_pk_mul_f32 {v(r,2)}, {v(r,2)}, {v(vT0,2)} op_sel_hi:[1,0]")
        A_("s_branch CH_CVT")
    if cut >= 0:
        A_.label("CH_CUT")
        A_(f"s_cmp_lt_u32 {s(sSTEP)}, {nsteps}")
        A_("s_cbranch_scc1 CH_A")
        A_(f"s_branch {DONE}")
    A_.label(ABORT)
    A_(f"s_mov_b32 s97, {s(sSTEP)}")
    A_(f"s_mov_b32 {s(sSTEP)}, 0xdead")
    A_.label(DONE)
```

```python
from asmlib import *
from layout import *
from chain2 import srd, bits
import struct, math
def f2u(x): return struct.unpack("<I", struct.pack("<f", x))[0]

gL16 = 1; gXR = 2
gXG = 10
gOUT = 18; gFV = 19; gT0 = 20; gT1 = 21
gACC = 24
gXF = 40
gPK = 56
gRAW = 64
sWS, sX = 8, 12
sWSRD = 16
sWV = 21
gS, gN, gSEG, gSTEP = 22, 23, 24, 25
gOUTB, gOUTS = 26, 27
gFLAG = 28
gBUF, gBUFN = 29, 30
gXS = 31
gROWS, gCOLB = 32, 33
gT = 40
DS = None
G_STG = 98304
XBUF = 32768

def g_consts(A_):
    A_(f"v_lshlrev_b32 {v(gL16)}, 4, v0")
    A_(f"s_cmp_eq_u32 {s(sWV)}, 0")
    A_(f"s_cselect_b32 {s(gT)}, 0, 0x40000000")
    A_(f"v_mov_b32 {v(gFV)}, {s(gT)}")
    A_(f"v_and_b32 {v(gT0)}, 31, v0")
    A_(f"v_lshlrev_b32 {v(gXR)}, 10, {v(gT0)}")
    A_(f"v_lshrrev_b32 {v(gT1)}, 5, v0")
    A_(f"v_and_b32 {v(gT0)}, 15, v0")
    A_(f"v_xor_b32 {v(gT0)}, {v(gT0)}, {v(gT1)}")
    for b in range(7, -1, -1):
        A_(f"v_xor_b32 {v(gT1)}, {2*b}, {v(gT0)}")
        A_(f"v_lshl_add_u32 {v(gXR+b)}, {v(gT1)}, 4, {v(gXR)}")
    A_(f"s_and_b32 {s(gT)}, {s(sWV)}, 1")
    A_(f"s_lshl_b32 {s(gT)}, {s(gT)}, 3")
    for i in range(8):
        A_(f"s_add_u32 {s(gT+1)}, {s(gT)}, {i}")
        A_(f"v_xor_b32 {v(gT0)}, {s(gT+1)}, v0")
        A_(f"v_and_b32 {v(gT0)}, 15, {v(gT0)}")
        A_(f"v_and_b32 {v(gT1)}, 48, v0")
        A_(f"v_or_b32 {v(gT0)}, {v(gT0)}, {v(gT1)}")
        A_(f"v_lshlrev_b32 {v(gXG+i)}, 4, {v(gT0)}")

def g_load_weights(A_, small=None, rank_s=None):
    vG, vSW, vSR = gRAW, gRAW+1, gRAW+2
    t = gT
    if small is None:
        A_(f"v_lshrrev_b32 {v(gT0)}, 2, v0")
        A_(f"v_mul_lo_u32 {v(vG)}, {v(gT0)}, {s(gROWS)}")
        A_(f"v_and_b32 {v(gT0)}, 3, v0")
        A_(f"v_lshl_add_u32 {v(vG)}, {v(gT0)}, 4, {v(vG)}")
    else:
        bits(A_, vG, [(2,4,5), (0,1,4)], tmp=gT0)
        A_(f"v_bfe_u32 {v(gT0)}, v0, 1, 1")
        A_(f"v_lshl_add_u32 {v(vG)}, {v(gT0)}, 24, {v(vG)}")
    A_(f"s_lshl_b32 {s(t)}, {s(sWV)}, 13")
    A_(f"s_add_u32 {s(t)}, {s(t)}, {G_STG}")
    bits(A_, vSW, [(4,2,8), (1,1,7), (2,2,5), (0,1,4)], add_s=t, tmp=gT0)
    bits(A_, vSR, [(5,1,9), (4,1,7), (2,2,5), (0,2,3)], add_s=t, tmp=gT0)
    A_(f"s_lshl_b32 {s(t+1)}, {s(gROWS)}, 4")
    A_(f"s_mov_b32 {s(t)}, {s(gCOLB)}")
    for b in range(4):
        for i in range(8):
            A_(f"buffer_load_dwordx4 {a(32*b+4*i,4)}, {v(vG)}, {s(sWSRD,4)}, {s(t)} offen")
            A_(f"s_add_u32 {s(t)}, {s(t)}, {s(t+1)}")
    if rank_s is not None: g_prefetch_x(A_, rank_s)
    if small is not None:
        vGG = gRAW+3
        bits(A_, vGG, [(2,4,1)], tmp=gT0)
        A_(f"v_and_b32 {v(gT0)}, 3, v0")
        A_(f"v_cmp_ne_u32 vcc, 2, {v(gT0)}")
        A_(f"v_mov_b32 {v(gT1)}, 0x1000000")
        A_("s_nop 0")
        A_(f"v_cndmask_b32 {v(vGG)}, {v(vGG)}, {v(gT1)}, vcc")
        A_(f"s_cmp_eq_u32 {s(sWV)}, 0")
        A_(f"s_cbranch_scc0 {small}_NOGATE")
        for b in range(4):
            for i in range(8):
                A_(f"buffer_load_ushort {v(gRAW+8+8*b+i)}, {v(vGG)}, s[48:51], 0 offen offset:{(128*b+16*i)*2}")
        A_("s_waitcnt vmcnt(0)")
        for b in range(4):
            for i in range(8):
                A_(f"v_accvgpr_read_b32 {v(gT0)}, {a(32*b+4*i)}")
                A_(f"v_or_b32 {v(gT0)}, {v(gT0)}, {v(gRAW+8+8*b+i)}")
                A_(f"v_accvgpr_write_b32 {a(32*b+4*i)}, {v(gT0)}")
        A_("s_nop 1")
        A_.label(f"{small}_NOGATE")
        A_("s_waitcnt vmcnt(0)")
    for b in range(4):
        if small is None: A_(f"s_waitcnt vmcnt({8*(3-b) + (16 if rank_s is not None else 0)})")
        for i in range(8):
            A_(f"ds_write_b128 {v(vSW)}, {a(32*b+4*i,4)} offset:{i*1024}")
        A_("s_waitcnt lgkmcnt(0)")
        for kk in range(8):
            for m in range(2):
                A_(f"ds_read_b64_tr_b16 {a(32*b+4*kk+2*m,2)}, {v(vSR)} offset:{kk*1024+m*256}")
        A_("s_waitcnt lgkmcnt(0)")

def g_prefetch_x(A_, rank_s):
    t = gT
    A_(f"s_lshl_b32 {s(t)}, {s(rank_s)}, 10")
    A_(f"s_lshl_b32 {s(t+1)}, {s(sWV)}, 19")
    A_(f"s_lshl_b32 {s(t+1)}, {s(sWV)}, 15")
    A_(f"s_add_u32 {s(t)}, {s(t)}, {s(t+1)}")
    for i in range(16):
        A_(f"buffer_load_dwordx4 {v(gRAW+8+4*(i&3),4)}, {v(gL16)}, {s(sX,4)}, {s(t)} offen")
        A_(f"s_add_u32 {s(t)}, {s(t)}, {4*32768}")

def g_stage(A_, buf_s):
    t = gT
    A_(f"s_lshl_b32 {s(t)}, {s(sWV)}, 13")
    A_(f"s_add_u32 {s(t+1)}, {s(t)}, {s(gXS)}")
    A_(f"s_add_u32 {s(t)}, {s(t)}, {s(buf_s)}")
    for i in range(8):
        A_(f"s_mov_b32 m0, {s(t)}")
        if i < 7: A_(f"s_add_u32 {s(t)}, {s(t)}, 1024")
        else: A_("s_nop 0")
        A_(f"buffer_load_dwordx4 {v(gXG+i)}, {s(sX,4)}, {s(t+1)} offen lds")
        if i < 7: A_(f"s_add_u32 {s(t+1)}, {s(t+1)}, 1024")

def g_loop(A_, kind, pfx, nstores):
    t = gT
    L = lambda x: f"{pfx}_{x}"
    A_(f"s_mov_b32 {s(gBUF)}, 0")
    A_(f"s_lshl_b32 {s(gXS)}, {s(gSEG)}, 15")
    A_(f"s_mov_b32 {s(gBUFN)}, 0")
    g_stage(A_, gBUFN)
    A_(f"s_lshl_b32 {s(t+2)}, {s(gSTEP)}, 15")
    A_(f"s_add_u32 {s(gXS)}, {s(gXS)}, {s(t+2)}")
    A_(f"s_mov_b32 {s(gBUFN)}, {XBUF}")
    g_stage(A_, gBUFN)
    A_(f"v_mov_b32 {v(gT1)}, 0x40000000")
    for k in range(nstores):
        A_(f"buffer_store_dword {v(gT1)}, {v(gT1)}, {s(sWS,4)}, 0 offen")
    A_(f"s_mov_b32 {s(gS)}, 0")
    A_(f"s_waitcnt vmcnt({8 + nstores})")
    A_(f"s_branch {L('ENTER')}")
    A_.label(L("LOOP"))
    A_(f"s_waitcnt vmcnt({1 + 8 + 2*nstores})")
    A_.label(L("ENTER"))
    A_("s_barrier")
    if DS: DS(0, gS)
    A_(f"s_max_u32 {s(t)}, {s(gS)}, 2")
    A_(f"s_sub_u32 {s(t)}, {s(t)}, 2")
    A_(f"v_mov_b32 {v(gT0)}, {s(t)}")
    A_("s_mov_b64 exec, 1")
    A_(f"buffer_store_dword {v(gT0)}, {v(gFV)}, {s(sWS,4)}, {s(gFLAG)} offen sc1")
    A_("s_mov_b64 exec, -1")
    A_(f"s_lshl_b32 {s(t+2)}, {s(gSTEP)}, 15")
    A_(f"s_add_u32 {s(gXS)}, {s(gXS)}, {s(t+2)}")
    A_(f"s_add_u32 {s(gBUFN)}, {s(gBUFN)}, {XBUF}")
    A_(f"s_cmp_ge_u32 {s(gBUFN)}, {3*XBUF}")
    A_(f"s_cselect_b32 {s(t+2)}, {3*XBUF}, 0")
    A_(f"s_sub_u32 {s(gBUFN)}, {s(gBUFN)}, {s(t+2)}")
    A_(f"s_lshl_b32 {s(t+4)}, {s(sWV)}, 13")
    A_(f"s_add_u32 {s(t+5)}, {s(t+4)}, {s(gXS)}")
    A_(f"s_add_u32 {s(t+4)}, {s(t+4)}, {s(gBUFN)}")
    def xread(kk): return f"ds_read_b128 {v(gXF+4*(kk&3),4)}, {v(gXR+(kk&7))} offset:{(kk>>3)*256}"
    for kk in range(4): A_(xread(kk))
    def body(orient):
        for kk in range(32):
            A_(f"s_waitcnt lgkmcnt({min(3, 31-kk)})")
            c = "0" if kk == 0 else v(gACC,16)
            if orient == 'KQ':
                A_(f"v_mfma_f32_32x32x16_bf16 {v(gACC,16)}, {a(4*kk,4)}, {v(gXF+4*(kk&3),4)}, {c}")
            else:
                A_(f"v_mfma_f32_32x32x16_bf16 {v(gACC,16)}, {v(gXF+4*(kk&3),4)}, {a(4*kk,4)}, {c}")
            if kk + 4 < 32: A_(xread(kk+4))
            if (kk & 3) == 1:
                A_(f"s_mov_b32 m0, {s(t+4)}")
                A_(f"s_add_u32 {s(t+4)}, {s(t+4)}, 1024")
            if (kk & 3) == 2:
                A_(f"buffer_load_dwordx4 {v(gXG+(kk>>2))}, {s(sX,4)}, {s(t+5)} offen lds")
                A_(f"s_add_u32 {s(t+5)}, {s(t+5)}, 1024")
    if kind == 'SM':
        A_(f"s_cmp_eq_u32 {s(sWV)}, 1")
        A_(f"s_cbranch_scc1 {L('SMV')}")
        body('KQ')
        A_(f"s_branch {L('SMJ')}")
        A_.label(L("SMV"))
        body('V')
        A_.label(L("SMJ"))
    else:
        body('V' if kind == 'V' else 'KQ')
    A_(f"s_add_u32 {s(gBUF)}, {s(gBUF)}, {XBUF}")
    A_(f"s_cmp_ge_u32 {s(gBUF)}, {3*XBUF}")
    A_(f"s_mov_b32 {s(t)}, {XBUF}")
    A_(f"s_cselect_b32 {s(t)}, {(-2*XBUF) & 0xffffffff}, {s(t)}")
    A_(f"s_cselect_b32 {s(t+1)}, 0, {s(gBUF)}")
    A_(f"s_mov_b32 {s(gBUF)}, {s(t+1)}")
    for b in range(8): A_(f"v_add_u32 {v(gXR+b)}, {s(t)}, {v(gXR+b)}")
    A_("s_nop 3")
    if kind == 'QB':
        cq = 0.25*math.log2(math.e)
        A_(f"s_mov_b32 {s(t)}, {hex(f2u(cq))}")
        for r in range(16): A_(f"v_mul_f32 {v(gACC+r)}, {s(t)}, {v(gACC+r)}")
    if kind == 'SM':
        A_(f"v_mul_f32 {v(gT0)}, {hex(f2u(-math.log2(math.e)))}, {v(gACC+8)}")
        A_(f"v_exp_f32 {v(gT0)}, {v(gT0)}")
        A_("s_nop 0")
        A_(f"v_add_f32 {v(gT0)}, 1.0, {v(gT0)}")
        A_(f"v_rcp_f32 {v(gT0)}, {v(gT0)}")
    for j in range(8): A_(f"v_cvt_pk_bf16_f32 {v(gPK+j)}, {v(gACC+2*j)}, {v(gACC+2*j+1)}")
    A_(f"s_mul_i32 {s(t)}, {s(gSEG)}, {s(gOUTS)}")
    A_(f"s_add_u32 {s(t)}, {s(t)}, {s(gOUTB)}")
    if kind in ('KQ', 'V'):
        A_(f"buffer_store_dwordx4 {v(gPK,4)}, {v(gOUT)}, {s(sWS,4)}, {s(t)} offen sc1")
        A_(f"buffer_store_dwordx4 {v(gPK+4,4)}, {v(gOUT)}, {s(sWS,4)}, {s(t)} offen offset:512 sc1")
    elif kind == 'QB':
        A_(f"buffer_store_dwordx4 {v(gPK,4)}, {v(gL16)}, {s(sWS,4)}, {s(t)} offen sc1")
        A_(f"buffer_store_dwordx4 {v(gPK+4,4)}, {v(gL16)}, {s(sWS,4)}, {s(t)} offen offset:1024 sc1")
    else:
        A_(f"s_lshl_b32 {s(t)}, {s(gSEG)}, 10")
        A_(f"s_cmp_eq_u32 {s(sWV)}, 1")
        A_(f"s_cbranch_scc1 {L('STV')}")
        A_(f"s_cmp_eq_u32 {s(sWV)}, 0")
        A_(f"s_cbranch_scc0 {L('STN')}")
        A_(f"s_add_u32 {s(t+1)}, {s(t)}, {WS_KB}")
        A_(f"buffer_store_dwordx4 {v(gPK,4)}, {v(gL16)}, {s(sWS,4)}, {s(t+1)} offen sc1")
        A_(f"s_lshl_b32 {s(t+1)}, {s(gSEG)}, 7")
        A_(f"s_add_u32 {s(t+1)}, {s(t+1)}, {WS_G}")
        A_(f"v_lshlrev_b32 {v(gT1)}, 2, v0")
        A_("s_mov_b64 exec, 0xffffffff")
        A_(f"buffer_store_dword {v(gT0)}, {v(gT1)}, {s(sWS,4)}, {s(t+1)} offen sc1")
        A_("s_mov_b64 exec, -1")
        A_(f"s_branch {L('STD')}")
        A_.label(L("STV"))
        A_(f"s_add_u32 {s(t+1)}, {s(t)}, {WS_VB}")
        A_(f"s_mov_b32 {s(t+2)}, 0x0000ffff")
        A_(f"s_mov_b32 {s(t+3)}, 0x0000ffff")
        A_(f"s_mov_b64 exec, {s(t+2,2)}")
        A_(f"buffer_store_dwordx4 {v(gPK,4)}, {v(gOUT)}, {s(sWS,4)}, {s(t+1)} offen sc1")
        A_(f"buffer_store_dwordx4 {v(gPK+4,4)}, {v(gOUT)}, {s(sWS,4)}, {s(t+1)} offen offset:512 sc1")
        A_("s_mov_b64 exec, -1")
        A_(f"s_branch {L('STD')}")
        A_.label(L("STN"))
        A_("s_waitcnt vmcnt(0)")
        A_.label(L("STD"))
    A_(f"s_add_u32 {s(gSEG)}, {s(gSEG)}, {s(gSTEP)}")
    A_(f"s_add_u32 {s(gS)}, {s(gS)}, 1")
    A_(f"s_cmp_lt_u32 {s(gS)}, {s(gN)}")
    A_(f"s_cbranch_scc1 {L('LOOP')}")
    A_("s_waitcnt vmcnt(0)")
    A_("s_barrier")
    A_(f"s_cmp_eq_u32 {s(sWV)}, 0")
    A_(f"s_cbranch_scc0 {L('END')}")
    A_(f"v_mov_b32 {v(gT0)}, {s(gN)}")
    A_("s_mov_b64 exec, 1")
    A_(f"buffer_store_dword {v(gT0)}, {v(gFV)}, {s(sWS,4)}, {s(gFLAG)} offen sc1")
    A_("s_mov_b64 exec, -1")
    A_("s_waitcnt vmcnt(0)")
    A_.label(L("END"))

def g_role(A_, wi, P, rank_s=None, hook=None):
    t = gT
    g_consts(A_)
    srd(A_, sX, P['x'], 2*MB)
    A_(f"s_lshl_b32 {s(gFLAG)}, {s(wi)}, 7")
    A_(f"s_add_u32 {s(gFLAG)}, {s(gFLAG)}, {FL_G}")
    A_(f"s_cmp_lt_u32 {s(wi)}, 192")
    A_("s_cbranch_scc0 G_BROLE")
    A_(f"s_lshr_b32 {s(t+4)}, {s(wi)}, 1")
    A_(f"s_and_b32 {s(gSEG)}, {s(wi)}, 1")
    A_(f"s_mov_b32 {s(gSTEP)}, 2")
    A_(f"s_mov_b32 {s(gN)}, 32")
    A_(f"s_and_b32 {s(t+5)}, {s(t+4)}, 31")
    A_(f"s_lshr_b32 {s(t+4)}, {s(t+4)}, 5")
    A_(f"s_mov_b32 {s(gROWS)}, 8192")
    A_(f"s_lshl_b32 {s(gCOLB)}, {s(t+5)}, 8")
    A_(f"s_lshl_b32 {s(t)}, {s(sWV)}, 6")
    A_(f"s_add_u32 {s(gCOLB)}, {s(gCOLB)}, {s(t)}")
    A_(f"s_mov_b32 {s(gOUTS)}, {32*8192}")
    A_(f"s_lshl_b32 {s(gOUTB)}, {s(t+5)}, 13")
    A_(f"s_cmp_eq_u32 {s(t+4)}, 1")
    A_("s_cbranch_scc1 G_VROLE")
    A_(f"s_cmp_eq_u32 {s(t+4)}, 0")
    A_(f"s_cselect_b32 {s(t)}, {s(P['Wk'])}, {s(P['Wq'])}")
    A_(f"s_cselect_b32 {s(t+1)}, {s(P['Wk']+1)}, {s(P['Wq']+1)}")
    A_(f"s_cselect_b32 {s(t+2)}, {WS_KX}, {WS_QX}")
    A_(f"s_add_u32 {s(gOUTB)}, {s(gOUTB)}, {s(t+2)}")
    srd(A_, sWSRD, t, 4*MB)
    A_(f"s_lshl_b32 {s(t)}, {s(sWV)}, 10")
    A_(f"s_add_u32 {s(gOUTB)}, {s(gOUTB)}, {s(t)}")
    bits(A_, gOUT, [(3,1,12), (5,1,8), (4,1,7), (2,1,6), (0,2,4)], tmp=gT0)
    g_load_weights(A_, rank_s=rank_s)
    if hook: hook('H1')
    g_loop(A_, 'KQ', 'GKQ', 2)
    A_("s_branch G_DONE")
    A_.label("G_VROLE")
    srd(A_, sWSRD, P['Wv'], 4*MB)
    A_(f"s_add_u32 {s(gOUTB)}, {s(gOUTB)}, {WS_VX}")
    A_(f"s_lshl_b32 {s(t)}, {s(sWV)}, 11")
    A_(f"s_add_u32 {s(gOUTB)}, {s(gOUTB)}, {s(t)}")
    bits(A_, gOUT, [(4,1,10), (5,1,8), (0,4,4)], tmp=gT0)
    g_load_weights(A_, rank_s=rank_s)
    if hook: hook('H2')
    g_loop(A_, 'V', 'GV', 2)
    A_("s_branch G_DONE")
    A_.label("G_BROLE")
    A_(f"s_cmp_lt_u32 {s(wi)}, 208")
    A_("s_cbranch_scc0 G_SMROLE")
    A_(f"s_sub_u32 {s(t+4)}, {s(wi)}, 192")
    A_(f"s_and_b32 {s(t+5)}, {s(t+4)}, 3")
    A_(f"s_lshr_b32 {s(t+4)}, {s(t+4)}, 2")
    A_(f"s_lshl_b32 {s(gSEG)}, {s(t+4)}, 4")
    A_(f"s_mov_b32 {s(gSTEP)}, 1")
    A_(f"s_mov_b32 {s(gN)}, 16")
    A_(f"s_mov_b32 {s(gROWS)}, 1024")
    A_(f"s_lshl_b32 {s(gCOLB)}, {s(t+5)}, 8")
    A_(f"s_lshl_b32 {s(t)}, {s(sWV)}, 6")
    A_(f"s_add_u32 {s(gCOLB)}, {s(gCOLB)}, {s(t)}")
    A_(f"s_mov_b32 {s(gOUTS)}, {32*1024}")
    A_(f"s_lshl_b32 {s(gOUTB)}, {s(t+5)}, 13")
    A_(f"s_lshl_b32 {s(t)}, {s(sWV)}, 11")
    A_(f"s_add_u32 {s(gOUTB)}, {s(gOUTB)}, {s(t)}")
    A_(f"s_add_u32 {s(gOUTB)}, {s(gOUTB)}, {WS_QB}")
    srd(A_, sWSRD, P['wq'], 512*1024)
    g_load_weights(A_, rank_s=rank_s)
    if hook: hook('H3')
    g_loop(A_, 'QB', 'GQB', 2)
    A_("s_branch G_DONE")
    A_.label("G_SMROLE")
    A_(f"s_cmp_lt_u32 {s(wi)}, 216")
    A_("s_cbranch_scc0 G_IDLE")
    A_(f"s_sub_u32 {s(t+4)}, {s(wi)}, 208")
    A_(f"s_lshl_b32 {s(gSEG)}, {s(t+4)}, 3")
    A_(f"s_mov_b32 {s(gSTEP)}, 1")
    A_(f"s_mov_b32 {s(gN)}, 8")
    A_(f"s_mov_b32 {s(gROWS)}, 32")
    A_(f"s_mov_b32 {s(gCOLB)}, 0")
    A_(f"s_cmp_eq_u32 {s(sWV)}, 1")
    A_(f"s_cselect_b32 {s(t)}, {s(P['wv'])}, {s(P['wk'])}")
    A_(f"s_cselect_b32 {s(t+1)}, {s(P['wv']+1)}, {s(P['wk']+1)}")
    srd(A_, sWSRD, t, 16384)
    srd(A_, 48, P['gate'], 1024)
    bits(A_, gOUT, [(5,1,8), (0,4,4)], tmp=gT0)
    g_load_weights(A_, small='GSM', rank_s=rank_s)
    if hook: hook('H4')
    g_loop(A_, 'SM', 'GSM', 2)
    A_("s_branch G_DONE")
    A_.label("G_IDLE")
    A_("s_waitcnt vmcnt(0)")
    if hook: hook('H5')
    A_.label("G_DONE")
```

```python
import sys, math, struct
from asmlib import *
from layout import *
import kwrap, gemm, battn, final
import chain3 as C
from chain3 import *
def f2u(x): return struct.unpack("<I", struct.pack("<f", x))[0]
NAME = "gated_mix__memory_aug_recurrent_mem_tr__grouped_kv_mqa__prompt_kernel"
P = kwrap.PTR
sXCC, sWI, sGI = 92, 94, 95

PROF = False
def stamp(A_, k, r=254):
    if not PROF: return
    lab = A_.new("PF")
    A_(f"s_cmp_eq_u32 {s(sWV)}, 0")
    A_(f"s_cbranch_scc0 {lab}")
    A_("s_memrealtime s[98:99]")
    A_(f"s_lshl_b32 s100, {s(sGI)}, 7")
    A_(f"s_add_u32 s100, s100, {WS_TIME + 65536 + 4*k}")
    A_("s_waitcnt lgkmcnt(0)")
    A_(f"v_mov_b32 v{r}, s98")
    A_(f"v_mov_b32 v{r+1}, 0")
    A_("s_mov_b64 exec, 1")
    A_(f"buffer_store_dword v{r}, v{r+1}, {s(sWS,4)}, s100 offen")
    A_("s_mov_b64 exec, -1")
    A_.label(lab)

def stamp_dyn(A_, base, idx_s, mul, r=254):
    if not PROF: return
    lab = A_.new("PD")
    A_(f"s_cmp_eq_u32 {s(sWV)}, 0")
    A_(f"s_cbranch_scc0 {lab}")
    A_("s_memrealtime s[98:99]")
    A_("s_memtime s[56:57]")
    A_(f"s_lshl_b32 s100, {s(sGI)}, 8")
    A_(f"s_mul_i32 s101, {s(idx_s)}, {4*mul}")
    A_("s_add_u32 s100, s100, s101")
    A_(f"s_add_u32 s100, s100, {WS_TIME + 131072 + 4*base}")
    A_("s_waitcnt lgkmcnt(0)")
    A_(f"v_mov_b32 v{r}, s98")
    A_(f"v_mov_b32 v{r+1}, 0")
    A_("s_mov_b64 exec, 1")
    A_(f"buffer_store_dword v{r}, v{r+1}, {s(sWS,4)}, s100 offen")
    A_(f"v_mov_b32 v{r}, s56")
    A_("s_add_u32 s100, s100, 65536")
    A_(f"buffer_store_dword v{r}, v{r+1}, {s(sWS,4)}, s100 offen")
    A_("s_mov_b64 exec, -1")
    A_.label(lab)

def init_issue(A_, pfx):
    A_(f"s_cmp_eq_u32 {s(sWV)}, 0")
    A_(f"s_cbranch_scc0 {pfx}_NOINIT")
    A_("v_mov_b32 v253, 0") if False else None
    A_(f"v_mov_b32 v22, 0")
    A_("v_lshlrev_b32 v23, 2, v0")
    A_(f"s_lshl_b32 s44, {s(sGI)}, 6")
    A_(f"s_add_u32 s44, s44, {FL_OB}")
    A_("s_mov_b64 exec, 0xffff")
    A_(f"buffer_store_dword v22, v23, {s(sWS,4)}, s44 offen sc1")
    A_("s_mov_b64 exec, 1")
    A_(f"s_lshl_b32 s44, {s(sWI)}, 7")
    A_(f"s_add_u32 s44, s44, {FL_G}")
    A_(f"s_lshl_b32 s45, {s(sH)}, 7")
    A_(f"s_add_u32 s45, s45, {FL_KM}")
    A_(f"s_cmp_eq_u32 {s(sXCC)}, 0")
    A_("s_cselect_b32 s44, s45, s44")
    A_(f"buffer_store_dword v22, v23, {s(sWS,4)}, s44 offen sc1")
    A_("s_mov_b64 exec, -1")
    A_.label(f"{pfx}_NOINIT")

def signal(A_, pfx, words, dbg):
    A_(f"s_cmp_eq_u32 {s(sWV)}, 0")
    A_(f"s_cbranch_scc0 {pfx}_NOSIG")
    A_("s_mov_b64 exec, 1")
    A_("v_mov_b32 v23, 1")
    for w_ in words:
        A_(f"v_mov_b32 v22, {w_}")
        A_(f"buffer_atomic_add v23, v22, {s(dbg,4)}, 0 offen")
    A_("s_mov_b64 exec, -1")
    A_.label(f"{pfx}_NOSIG")

def chain_role(A_, **kw):
    def early():
        lane_consts(A_)
        init_issue(A_, "CI")
        A_(f"s_lshl_b32 {s(sT)}, {s(sH)}, 13")
        A_(f"s_lshl_b32 {s(sT+1)}, {s(sWV)}, 11")
        A_(f"s_add_u32 {s(sT)}, {s(sT)}, {s(sT+1)}")
        A_(f"s_add_u32 {s(sPST)}, {s(sT)}, {WS_PART}")
        A_(f"s_add_u32 {s(sT)}, {s(sPST)}, {PART_SLOT}")
        for k in range(4): A_(f"v_mov_b32 {v(ACC+k)}, -1")
        for th in range(2):
            A_(f"buffer_store_dwordx4 {v(ACC,4)}, {v(vL16)}, {s(sWS,4)}, {s(sPST)} offen offset:{th*1024}")
            A_(f"buffer_store_dwordx4 {v(ACC,4)}, {v(vL16)}, {s(sWS,4)}, {s(sT)} offen offset:{th*1024}")
        A_(f"s_cmp_lt_u32 {s(sH)}, 24")
        A_("s_cbranch_scc0 CH_NORING")
        A_(f"s_cmp_eq_u32 {s(sWV)}, 0")
        A_("s_cbranch_scc0 CH_NORING")
        A_(f"s_lshl_b32 {s(sT)}, {s(sH)}, 10")
        A_(f"s_add_u32 {s(sT)}, {s(sT)}, {WS_RING}")
        A_(f"buffer_store_dwordx4 {v(ACC,4)}, {v(vL16)}, {s(sWS,4)}, {s(sT)} offen")
        A_.label("CH_NORING")
    def done():
        A_("s_barrier")
        signal(A_, "CS", (D_ARRIVE, D_INIT), sDBG)
    stamp(A_, 1, 22)
    load_weights(A_, P, early, done)
    stamp(A_, 2, 22)
    A_("s_mov_b32 s96, 1")
    A_(f"s_mov_b32 {s(sSPIN)}, 0")
    A_(f"v_and_b32 {v(vT0)}, 1, v0")
    A_(f"v_mov_b32 {v(ACC+1)}, 32")
    A_(f"v_mov_b32 {v(ACC+2)}, 256")
    A_(f"v_cmp_eq_u32 vcc, 1, {v(vT0)}")
    A_(f"v_lshlrev_b32 {v(vT0)}, 2, {v(vT0)}")
    A_("s_nop 1")
    A_(f"v_cndmask_b32 {v(ACC+1)}, {v(ACC+1)}, {v(ACC+2)}, vcc")
    A_(f"v_add_u32 {v(vT0)}, {D_ARRIVE}, {v(vT0)}")
    A_.label("CH_WA")
    A_(f"buffer_load_dword {v(vT1)}, {v(vT0)}, {s(sDBG,4)}, 0 offen sc1")
    A_(f"s_add_u32 {s(sSPIN)}, {s(sSPIN)}, 1")
    A_(f"s_cmp_gt_u32 {s(sSPIN)}, {SPIN_MAX*4}")
    A_("s_cbranch_scc1 K_ABORT")
    A_("s_waitcnt vmcnt(0)")
    A_(f"v_cmp_gt_u32 vcc, {v(ACC+1)}, {v(vT1)}")
    A_("s_cbranch_vccnz CH_WA")
    A_("s_barrier")
    A_(f"s_mov_b32 {s(sT+2)}, 2")
    kv_wait(A_, sT+2, "CH_KV0", "K_ABORT")
    A_(f"s_mov_b32 {s(sSTEP)}, 0")
    A_(f"s_mov_b32 {s(sPRD)}, {WS_PART}")
    A_(f"s_lshl_b32 {s(sT)}, {s(sH)}, 13")
    A_(f"s_lshl_b32 {s(sT+1)}, {s(sWV)}, 11")
    A_(f"s_add_u32 {s(sT)}, {s(sT)}, {s(sT+1)}")
    A_(f"s_add_u32 {s(sKXS)}, {s(sT)}, {WS_KX}")
    A_(f"s_add_u32 {s(sVXS)}, {s(sT)}, {WS_VX}")
    A_(f"s_add_u32 {s(sKXD)}, {s(sT+1)}, {L_KX0}")
    A_(f"s_mov_b32 m0, {s(sKXD)}")
    A_(f"s_add_u32 {s(sT+2)}, {s(sKXS)}, 1024")
    A_(f"buffer_load_dwordx4 {v(vL16)}, {s(sWS,4)}, {s(sKXS)} offen lds")
    A_(f"s_add_u32 {s(sT+3)}, {s(sKXD)}, 1024")
    A_(f"s_mov_b32 m0, {s(sT+3)}")
    A_("s_nop 0")
    A_(f"buffer_load_dwordx4 {v(vL16)}, {s(sWS,4)}, {s(sT+2)} offen lds")
    A_(f"buffer_load_dwordx4 {v(VXN,4)}, {v(vL16)}, {s(sWS,4)}, {s(sVXS)} offen")
    A_(f"buffer_load_dwordx4 {v(VXN+4,4)}, {v(vL16)}, {s(sWS,4)}, {s(sVXS)} offen offset:1024")
    A_(f"s_add_u32 {s(sKXS)}, {s(sKXS)}, {32*8192}")
    A_(f"s_add_u32 {s(sVXS)}, {s(sVXS)}, {32*8192}")
    A_(f"s_add_u32 {s(sKXD)}, {s(sT+1)}, {L_KX1}")
    A_(f"s_lshl_b32 {s(sT)}, {s(sH)}, 11")
    A_(f"s_lshl_b32 {s(sT+1)}, {s(sWV)}, 9")
    A_(f"s_add_u32 {s(sT)}, {s(sT)}, {s(sT+1)}")
    A_(f"s_add_u32 {s(sKMO)}, {s(sT)}, {WS_KM}")
    A_(f"s_add_u32 {s(sVMO)}, {s(sT)}, {WS_VM}")
    A_(f"s_mov_b32 {s(sRRS)}, {WS_RING}")
    A_(f"s_mov_b32 {s(sRWR)}, {WS_RING + 8192}")
    c = 128**-0.5 * math.log2(math.e)
    A_(f"s_mov_b32 {s(sC)}, {hex(f2u(c))}")
    A_(f"s_mov_b32 {s(sC+1)}, {hex(f2u(c))}")
    A_(f"s_mov_b32 {s(sLO)}, {hex(f2u(2.0**-40))}")
    A_(f"s_lshl_b32 {s(sFLG)}, {s(sH)}, 7")
    A_(f"s_add_u32 {s(sFLG)}, {s(sFLG)}, {FL_KM}")
    load_mem0(A_, P['mem0'])
    for k in range(4): A_(f"v_mov_b32 {v(KXR+28+k)}, -1")
    A_(f"s_xor_b32 {s(sPRS)}, {s(sPST)}, {PART_SLOT}")
    A_(f"ds_write_b128 {v(vMW)}, {v(M,4)}")
    A_(f"ds_write_b128 {v(vMW)}, {v(M+4,4)} offset:1024")
    zero(A_, ACC, 24)
    A_(f"s_cmp_eq_u32 {s(sWV)}, 0")
    A_(f"s_cselect_b32 {s(sT)}, 0, 0x40000000")
    A_(f"v_cmp_eq_u32 vcc, 0, v0")
    A_(f"v_mov_b32 {v(vT0)}, 0x40000000")
    A_(f"v_mov_b32 {v(vT1)}, {s(sT)}")
    A_(f"v_cndmask_b32 {v(vFLG)}, {v(vT0)}, {v(vT1)}, vcc")
    A_("s_waitcnt vmcnt(0)")
    stamp(A_, 3, 22)
    chain_loop(A_, 63, flags=True, dstamp=((lambda: stamp_dyn(A_, 0, sSTEP, 1, r=KXR+16)) if PROF else None), **kw)
    stamp(A_, 4, 22)
    A_(f"s_cmp_eq_u32 {s(sSTEP)}, 63")
    A_("s_cbranch_scc0 K_ABORT")
    chain_tail(A_)
    stamp(A_, 5, 22)

def gen(**kw):
    exper = kw.pop('exper', 0)
    A_ = Asm()
    hdr = open("gated_mix__memory_aug_recurrent_mem_tr__grouped_kv_mqa__prompt.s.ref").read().split("\n")
    lines = []
    for l in hdr:
        if l.startswith("; @launch"):
            lines.append("; @launch grid=(256,1,1) block=(256,1,1) lds=163840"); break
        lines.append(l)
    A_.lines += lines
    A_.lines += open("design_notes.txt").read().rstrip("\n").split("\n")
    A_('.amdgcn_target "amdgcn-amd-amdhsa--gfx950"')
    kwrap.kernel_head(A_, NAME)
    A_("s_cmp_ge_u32 s2, 256")
    A_("s_cbranch_scc1 K_END")
    kwrap.load_ptrs(A_)
    kwrap.wave_and_lane(A_)
    A_("s_waitcnt lgkmcnt(0)")
    srd(A_, sWS, P['ws'], WS_SIZE)
    srd(A_, sDBG, P['dbg'], 256)
    A_("s_mov_b32 s96, 0"); A_("s_mov_b32 s97, 0")
    kwrap.role_assign(A_, sXCC=sXCC)
    A_(f"s_cmp_ge_u32 {s(sH)}, 32"); A_("s_cbranch_scc1 K_END")
    A_(f"s_cmp_ge_u32 {s(sXCC)}, 8"); A_("s_cbranch_scc1 K_END")
    A_(f"s_lshl_b32 {s(sGI)}, {s(sXCC)}, 5")
    A_(f"s_add_u32 {s(sGI)}, {s(sGI)}, {s(sH)}")
    stamp(A_, 0)
    A_(f"s_sub_u32 {s(sWI)}, {s(sGI)}, 32")
    A_(f"s_cmp_eq_u32 {s(sXCC)}, 0")
    A_("s_cbranch_scc0 K_WORKER")
    chain_role(A_, **kw)
    A_("s_branch K_END")
    A_.label("K_WORKER")
    srd(A_, 56, P['dbg'], 256)
    init_issue(A_, "WI")
    stamp(A_, 1)
    if exper == 1:
        A_(f"s_lshl_b32 s40, {s(sWI)}, 7"); A_(f"s_add_u32 s40, s40, {FL_G}")
        A_("v_mov_b32 v2, 32"); A_("v_mov_b32 v1, 0"); A_("s_mov_b64 exec, 1")
        A_(f"buffer_store_dword v2, v1, {s(sWS,4)}, s40 offen sc1"); A_("s_waitcnt vmcnt(0)")
        A_("s_branch K_END")
    if exper == 3:
        A_("s_mov_b32 s28, 0")
        A_(f"v_mov_b32 v4, {D_ARRIVE}")
        A_.label("K_WARR")
        A_("buffer_load_dword v5, v4, s[56:59], 0 offen sc1")
        A_("s_add_u32 s28, s28, 1")
        A_("s_cmp_gt_u32 s28, 4000000")
        A_("s_cbranch_scc1 K_ABORT")
        A_("s_waitcnt vmcnt(0)")
        A_("v_cmp_gt_u32 vcc, 32, v5")
        A_("s_cbranch_vccz K_WARRD")
        A_("s_sleep 8")
        A_("s_branch K_WARR")
        A_.label("K_WARRD")
    gemm.DS = (lambda k, idx: stamp_dyn(A_, k, idx, 1)) if PROF else None
    gemm.g_role(A_, sWI, P, rank_s=20, hook=(lambda lab: signal(A_, lab, (D_INIT,), 56)))
    stamp(A_, 2)
    if exper == 2: A_("s_branch K_END")
    final.f_issue_weights(A_, P)
    srd(A_, sDBG, P['dbg'], 256)
    A_(f"s_mov_b32 s28, 0")
    A_(f"v_mov_b32 v4, {D_INIT}")
    A_.label("K_WI")
    A_(f"buffer_load_dword v5, v4, {s(sDBG,4)}, 0 offen sc1")
    A_("s_add_u32 s28, s28, 1")
    A_("s_cmp_gt_u32 s28, 4000000")
    A_("s_cbranch_scc1 K_ABORT")
    A_("s_waitcnt vmcnt(0)")
    A_("v_cmp_gt_u32 vcc, 256, v5") if False else None
    A_("v_mov_b32 v6, 256")
    A_("v_cmp_gt_u32 vcc, v6, v5")
    A_("s_cbranch_vccnz K_WI")
    A_("s_barrier")
    battn.DS = (lambda k, idx: stamp_dyn(A_, k, idx, 1)) if PROF else None
    battn.b_role(A_, waits=True, abort="K_ABORT")
    stamp(A_, 3)
    A_(f"s_sub_u32 {s(final.fSEG)}, {s(sXCC)}, 1")
    A_(f"s_mov_b32 {s(final.fTEAMS)}, 7")
    A_("s_mov_b32 s27, 0")
    final.f_role(A_, P, waits=True, abort="K_ABORT", stamp=(lambda k: stamp(A_, k)), preissued=True, dstamp=None)
    stamp(A_, 5)
    A_("s_branch K_END")
    A_.label("K_ABORT")
    A_("s_waitcnt vmcnt(0) lgkmcnt(0)")
    A_(f"s_lshl_b32 s40, {s(sGI)}, 2")
    A_(f"s_add_u32 s40, s40, {s(sWV)}")
    A_(f"s_lshl_b32 s40, s40, 3")
    A_(f"s_add_u32 s40, s40, {WS_TIME}")
    A_("v_mov_b32 v2, s96")
    A_("v_mov_b32 v3, s97")
    A_("v_mov_b32 v4, 0")
    A_("s_mov_b64 exec, 1")
    A_(f"buffer_store_dwordx2 v[2:3], v4, {s(sWS,4)}, s40 offen")
    A_("s_waitcnt vmcnt(0)")
    A_.label("K_END")
    A_("s_endpgm")
    A_('.section .rodata,"a"'); A_(".p2align 6"); A_(f".amdhsa_kernel {NAME}")
    A_("""  .amdhsa_next_free_vgpr 512
  .amdhsa_next_free_sgpr 102
  .amdhsa_accum_offset 256
  .amdhsa_group_segment_fixed_size 0
  .amdhsa_kernarg_size 128
  .amdhsa_user_sgpr_count 2
  .amdhsa_user_sgpr_kernarg_segment_ptr 1
  .amdhsa_system_sgpr_workgroup_id_x 1
.end_amdhsa_kernel""")
    return A_.text()

if __name__ == "__main__":
    kw = {a.split('=')[0]: int(a.split('=')[1]) for a in sys.argv[2:] if '=' in a}
    PROF = bool(kw.pop('prof', 0))
    final.OFL = {0: 'sc1', 1: '', 2: 'nt', 3: 'sc0'}[kw.pop('ofl', 0)]
    out = sys.argv[1] if len(sys.argv) > 1 else "gated_mix__memory_aug_recurrent_mem_tr__grouped_kv_mqa__prompt.s"
    open(out, "w").write(gen(**kw))
    print("wrote", out)
```
